```python
import torch

def _softmax(x, axis=-1):
    return torch.softmax(x, dim=axis)
def _gelu(x):
    return torch.nn.functional.gelu(x, approximate="tanh")
def _silu(x):
    return torch.nn.functional.silu(x)
def _sigmoid(x):
    return torch.sigmoid(x)
def _layernorm(x, axis=-1, eps=1e-5):
    m = x.mean(dim=axis, keepdim=True)
    v = x.var(dim=axis, keepdim=True, unbiased=False)
    return (x - m) / torch.sqrt(v + eps)
def _scatter_add(tgt, idx, src, axis=0):
    return tgt.clone().index_add_(axis, idx, src)
def _segment_sum(src, seg, n):
    out = torch.zeros((n,) + src.shape[1:], dtype=src.dtype)
    return out.index_add_(0, seg, src)
def _pad(x, pw):
    flat = tuple(v for pair in reversed(pw) for v in pair)
    return torch.nn.functional.pad(x, flat)

kernel_name = 'concat_heads__gqa_block_cached__mha_block_cached__near_ridge'

def setup_inputs():

    _w = (lambda a: (lambda t: t.to(torch.bfloat16) if t.is_floating_point() else t)(torch.as_tensor(a)))
    def _A_setup():
        B, Sq, D = 8, 64, 576
        Hq, Hkv, Sk, Dh = 32, 16, 512, 128
        assert Hq % Hkv == 0, (Hq, Hkv)
        return {
            "x": _w((lambda *s: torch.randn(*s, dtype=torch.bfloat16) * 0.8)(B, Sq, D)),
            "k_cache": _w((lambda *s: torch.randn(*s, dtype=torch.bfloat16) * 0.8)(B, Hkv, Sk, Dh)),
            "v_cache": _w((lambda *s: torch.randn(*s, dtype=torch.bfloat16) * 0.05)(B, Hkv, Sk, Dh)),
            "wq": _w((lambda *s: torch.randn(*s, dtype=torch.bfloat16) * 0.8)(D, Hq * Dh) * (D ** -0.5)),
            "wo": _w((lambda *s: torch.randn(*s, dtype=torch.bfloat16) * 0.05)(Hq * Dh, D) * ((Hq * Dh) ** -0.5)),
        }
    _A_in = _A_setup()

    def _B_setup():
        B, Sq, D = 8, 64, 576
        H, Sk, Dh = 32, 512, 128
        return {
            "x": _w((lambda *s: torch.randn(*s, dtype=torch.bfloat16) * 0.8)(B, Sq, D)),
            "k_cache": _w((lambda *s: torch.randn(*s, dtype=torch.bfloat16) * 0.8)(B, H, Sk, Dh)),
            "v_cache": _w((lambda *s: torch.randn(*s, dtype=torch.bfloat16) * 0.05)(B, H, Sk, Dh)),
            "wq": _w((lambda *s: torch.randn(*s, dtype=torch.bfloat16) * 0.8)(D, H * Dh) * (D ** -0.5)),
            "wo": _w((lambda *s: torch.randn(*s, dtype=torch.bfloat16) * 0.05)(H * Dh, D) * ((H * Dh) ** -0.5)),
        }
    _B_in = _B_setup()

    return {
        "A_x": _A_in["x"],
        "A_k_cache": _A_in["k_cache"],
        "A_v_cache": _A_in["v_cache"],
        "A_wq": _A_in["wq"],
        "A_wo": _A_in["wo"],
        "B_x": _B_in["x"],
        "B_k_cache": _B_in["k_cache"],
        "B_v_cache": _B_in["v_cache"],
        "B_wq": _B_in["wq"],
        "B_wo": _B_in["wo"],
    }

def reference(A_x, A_k_cache, A_v_cache, A_wq, A_wo, B_x, B_k_cache, B_v_cache, B_wq, B_wo):
    def _A_ref(x, k_cache, v_cache, wq, wo):
        B, Sq, D = x.shape
        Hq, Dh = 32, 128
        Hkv = k_cache.shape[1]
        rep = Hq // Hkv
        q = (lambda x, *d: x.permute(*d))((x @ wq).reshape(B, Sq, Hq, Dh), 0, 2, 1, 3)
        k = (lambda x, n, axis: torch.repeat_interleave(x, n, dim=axis))(k_cache, rep, axis=1)
        v = (lambda x, n, axis: torch.repeat_interleave(x, n, dim=axis))(v_cache, rep, axis=1)
        scores = torch.einsum("bhqd,bhkd->bhqk", q, k) * (Dh ** -0.5)
        p = _softmax(scores, axis=-1)
        o = torch.einsum("bhqk,bhkd->bhqd", p, v)
        return (lambda x, *d: x.permute(*d))(o, 0, 2, 1, 3).reshape(B, Sq, Hq * Dh) @ wo

    def _B_ref(x, k_cache, v_cache, wq, wo):
        B, Sq, D = x.shape
        H, Dh = 32, 128
        q = (lambda x, *d: x.permute(*d))((x @ wq).reshape(B, Sq, H, Dh), 0, 2, 1, 3)
        scores = torch.einsum("bhqd,bhkd->bhqk", q, k_cache) * (Dh ** -0.5)
        p = _softmax(scores, axis=-1)
        o = torch.einsum("bhqk,bhkd->bhqd", p, v_cache)
        return (lambda x, *d: x.permute(*d))(o, 0, 2, 1, 3).reshape(B, Sq, H * Dh) @ wo

    a = _A_ref(A_x, A_k_cache, A_v_cache, A_wq, A_wo)
    b = _B_ref(B_x, B_k_cache, B_v_cache, B_wq, B_wo)
    return torch.concatenate([a, b], axis=-1)
```

```python
import re

TRANS = ("v_exp_f32", "v_log_f32", "v_rcp_f32", "v_rsq_f32", "v_sqrt_f32", "v_sin_f32", "v_cos_f32")


def _regs(tok, kind):
    tok = tok.strip()
    tok = tok.lstrip("-")
    if tok.startswith("abs(") and tok.endswith(")"):
        tok = tok[4:-1]
    m = re.fullmatch(kind + r"(\d+)", tok)
    if m:
        return {int(m.group(1))}
    m = re.fullmatch(kind + r"\[(\d+):(\d+)\]", tok)
    if m:
        return set(range(int(m.group(1)), int(m.group(2)) + 1))
    return set()


class Ins:
    def __init__(self, text, block=0):
        self.text = text
        self.block = block
        self.label = text.endswith(":")
        self.comment = text.startswith(";")
        self.vw, self.vr, self.sw, self.sr = set(), set(), set(), set()
        self.kind = "other"
        self.srcC = set()
        self.srcAB = set()
        self.passes = 0
        self.states = 1
        if self.label or self.comment or text.startswith("."):
            self.states = 0
            self.kind = "none"
            return
        body = text.split(";")[0].strip()
        parts = body.split(None, 1)
        self.op = op = parts[0]
        rest = parts[1] if len(parts) > 1 else ""
        ops = [o.strip() for o in re.split(r",(?![^\[]*\])", rest)] if rest else []
        mods = ""
        if ops:
            sp = ops[-1].split(None, 1)
            ops[-1] = sp[0]
            mods = sp[1] if len(sp) > 1 else ""
        self.ops, self.mods = ops, mods

        def V(i):
            return _regs(ops[i], "v") if i < len(ops) else set()

        def S(i):
            if i >= len(ops):
                return set()
            t = ops[i].strip()
            if t == "vcc":
                return {"vcc"}
            if t == "m0":
                return {"m0"}
            if t == "exec":
                return {"exec"}
            return _regs(t, "s")

        n = len(ops)
        if op == "s_nop":
            self.kind = "nop"
            self.states = int(ops[0], 0) + 1
        elif op.startswith("v_mfma"):
            self.kind = "mfma"
            self.vw = V(0)
            self.srcAB = V(1) | V(2)
            self.srcC = V(3)
            self.vr = self.srcAB | self.srcC
            self.passes = 8 if "32x32x16" in op else 4
        elif op.startswith("v_permlane"):
            self.kind = "valu"
            self.perm = True
            self.vw = V(0) | V(1)
            self.vr = V(0) | V(1)
        elif op.startswith("v_readfirstlane") or op.startswith("v_readlane"):
            self.kind = "valu"
            self.sw = S(0)
            self.vr = V(1)
            self.sr = S(2)
        elif op.startswith("v_cmp"):
            self.kind = "valu"
            self.sw = S(0)
            for i in range(1, n):
                self.vr |= V(i)
                self.sr |= S(i)
        elif op.startswith("v_"):
            self.kind = "valu"
            self.vw = V(0)
            for i in range(1, n):
                self.vr |= V(i)
                self.sr |= S(i)
            if op.startswith("v_fmac") or op.startswith("v_writelane"):
                self.vr |= V(0)
            if "_co_" in op:
                self.sw |= S(1)
        elif op.startswith("ds_read") or op.startswith("ds_bpermute") or op.startswith("ds_swizzle"):
            self.kind = "ds"
            self.vw = V(0)
            for i in range(1, n):
                self.vr |= V(i)
        elif op.startswith("ds_"):
            self.kind = "ds"
            for i in range(n):
                self.vr |= V(i)
        elif op.startswith("buffer_load") or op.startswith("global_load"):
            self.kind = "vmem"
            lds = " lds" in (" " + mods) or "_lds_" in op
            self.lds = lds
            if lds:
                for i in range(n):
                    self.vr |= V(i)
                    self.sr |= S(i)
                self.sr.add("m0")
            else:
                self.vw = V(0)
                for i in range(1, n):
                    self.vr |= V(i)
                    self.sr |= S(i)
        elif op.startswith("buffer_store") or op.startswith("global_store") or op.startswith("buffer_atomic") or op.startswith("global_atomic"):
            self.kind = "vmem"
            self.store = True
            for i in range(n):
                self.vr |= V(i)
                self.sr |= S(i)
            self.sdata = V(0) if op.startswith("buffer") else V(1)
        elif op.startswith("s_"):
            self.kind = "salu"
            if op.startswith("s_cmp") or op.startswith("s_cbranch") or op in ("s_branch", "s_barrier", "s_waitcnt", "s_endpgm", "s_setprio", "s_sleep"):
                for i in range(n):
                    self.sr |= S(i)
            else:
                self.sw = S(0)
                for i in range(1, n):
                    self.sr |= S(i)
        self.trans = op.replace("_e32", "").replace("_e64", "") in TRANS


def need(p, c):
    r = 0
    pk, ck = p.kind, c.kind
    if pk == "valu":
        if ck == "mfma" and (p.vw & c.vr):
            r = max(r, 2)
        if ck == "valu":
            if p.trans and not c.trans and (p.vw & c.vr):
                r = max(r, 1)
            if p.trans and c.trans and (p.vw & c.vr):
                r = max(r, 1)
            if getattr(c, "perm", False) and (p.vw & c.vr):
                r = max(r, 2)
            if (c.op.startswith("v_readfirstlane") or c.op.startswith("v_readlane")) and (p.vw & c.vr):
                r = max(r, 1)
            if p.sw & c.sr:
                r = max(r, 4 if c.op.startswith("v_readlane") or c.op.startswith("v_writelane") else 2)
            if "dpp" in c.mods or "row_" in c.mods or "quad_perm" in c.mods:
                if p.vw & c.vr:
                    r = max(r, 2)
        if ck in ("vmem", "ds") and p.trans and (p.vw & c.vr):
            r = max(r, 1)
        if ck == "vmem" and (p.sw & c.sr):
            r = max(r, 5)
        if ck == "salu" and (p.sw & c.sr):
            r = max(r, 2)
    if pk == "mfma":
        big = 12 if p.passes == 8 else 8
        if ck == "mfma":
            if p.vw & c.srcAB:
                r = max(r, big)
            if p.vw & c.srcC and not (p.vw == c.srcC and p.passes == c.passes):
                r = max(r, big - 2)
            if p.vw & c.vw and not (p.vw == c.srcC):
                r = max(r, big - 2)
        elif ck in ("valu", "ds", "vmem"):
            if p.vw & (c.vr | c.vw):
                r = max(r, big)
            if ck == "valu" and (p.srcC & c.vw):
                r = max(r, 7 if p.passes == 8 else 3)
    if pk == "salu" and "m0" in p.sw and ck == "vmem" and getattr(c, "lds", False):
        r = max(r, 1)
    if pk == "vmem" and getattr(p, "store", False) and len(p.sdata) >= 3:
        if p.sdata & c.vw:
            r = max(r, 2 if ck == "valu" else 1)
    return r


class Asm:
    def __init__(self):
        self.ins = []
        self.block = 0
        self.nblocks = 0
        self.nlabel = 0

    def __call__(self, text):
        for line in text.split("\n"):
            line = line.strip()
            if line:
                self.ins.append(Ins(line, self.block))

    def label(self, stem="L"):
        self.nlabel += 1
        return f"{stem}_{self.nlabel}"

    def begin_cond(self):
        self.nblocks += 1
        self.block = self.nblocks

    def end_cond(self):
        self.block = 0

    def pad(self):
        out = []
        npad = 0
        for c in self.ins:
            if c.kind not in ("none",):
                worst = 0
                for idx in range(len(out) - 1, max(-1, len(out) - 80), -1):
                    p = out[idx]
                    if p.kind in ("none", "nop", "other"):
                        continue
                    r = need(p, c)
                    if r:
                        have = 0
                        for m in out[idx + 1:]:
                            if m.block == 0 or m.block == p.block or m.block == c.block:
                                have += m.states
                        worst = max(worst, r - have)
                if worst > 0:
                    nop = Ins(f"s_nop {worst - 1}", c.block)
                    out.append(nop)
                    npad += 1
            out.append(c)
        self.ins = out
        return npad

    def text(self):
        lines = []
        for i in self.ins:
            lines.append(i.text if (i.label or i.text.startswith(".")) else "    " + i.text)
        return "\n".join(lines) + "\n"


class Fifo:
    def __init__(self, asm, name, maxn):
        self.asm, self.name, self.maxn = asm, name, maxn
        self.q = []

    def push(self, tag):
        self.q.append(tag)
        assert len(self.q) <= self.maxn, (self.name, len(self.q))

    def count_for(self, tag):
        last = -1
        for i, t in enumerate(self.q):
            if t == tag:
                last = i
        if last < 0:
            return None
        return len(self.q) - 1 - last

    def wait(self, tag):
        n = self.count_for(tag)
        if n is None:
            return
        self.asm(f"s_waitcnt {self.name}({n})")
        self.q = self.q[len(self.q) - n:] if n else []

    def clear(self):
        self.q = []
```

```python
import copy
import struct
import sys

from asmlib import Asm, Fifo

NAME = "concat_heads__gqa_block_cached__mha_block_cached__near_ridge"

HEADER = """; Kernarg layout for this problem (104 bytes, ptrs only, base s[0:1]):
;   offset  32: d_in[4] A_wo  shape=(4096, 576) dtype=bfloat16
;   offset  72: d_in[9] B_wo  shape=(4096, 576) dtype=bfloat16
;   offset  96: d_ws      268435456 bytes workspace
"""


def f32hex(x):
    return "0x%08x" % struct.unpack("<I", struct.pack("<f", x))[0]


class Opt:
    stamps = False
    kv_nt = False
    wo_warm_step = 4
    dump = None


vKV = [4, 5, 6, 7]
vWq, vX, vWo, vRx = 8, 9, 10, 11
vRq = [12, 13, 14, 15]
vRk = [16, 17, 18, 19]
vRv = list(range(20, 28))
vRo, vLin, vSt, vDummy = 28, 29, 30, 31
vStamp = 3
vQ = 32
vO = 32
vL = 64
vOnes = 68
vXf = 68
FR0, NFR = 72, 14
vS = 128
sW, sLw, sRole, sBr = 4, 5, 6, 7
SX, SK, SV, SWQ, SWO, SWS = 8, 12, 16, 20, 24, 28
sXoff, sWqoff, sKVoff, sWooff = 32, 33, 34, 35
sL8k, sC, sStoff, sT, sT2, sHp, sB, sL4k, sL1k, sKVstr, sHH = 62, 63, 64, 65, 66, 67, 68, 69, 70, 71, 72

SLOT = 32768
WR = 3 * SLOT
QST = 20480
NQST = 3


def vr(b, n):
    return f"v[{b}:{b + n - 1}]"


def srd(b):
    return f"s[{b}:{b + 3}]"


class Gen:
    def __init__(self, opt):
        self.o = opt
        self.a = Asm()
        self.lg = Fifo(self.a, "lgkmcnt", 15)
        self.vm = {0: Fifo(self.a, "vmcnt", 63), 1: Fifo(self.a, "vmcnt", 63)}
        self.fr = 0
        self.base = {}
        self.nstamp = 0

    def role_block(self, role, body):
        a = self.a
        lab = a.label("skip")
        a(f"s_cmp_eq_u32 s{sRole}, {role}")
        a(f"s_cbranch_scc0 {lab}")
        a.begin_cond()
        body()
        a.end_cond()
        a(f"{lab}:")

    def role_wait(self, role, tag):
        if self.vm[role].count_for(tag) is None:
            return
        self.role_block(role, lambda: self.vm[role].wait(tag))

    def stamp(self):
        if not self.o.stamps:
            return
        a = self.a
        assert not self.lg.q
        a("s_memtime s[98:99]")
        a("s_waitcnt lgkmcnt(0)")
        a(f"v_writelane_b32 v{vStamp}, s98, {self.nstamp}")
        self.nstamp += 1

    def barrier(self):
        assert not self.lg.q, self.lg.q
        self.a("s_barrier")
        self.stamp()

    def rebase(self, name, regs, lo, hi):
        cur = self.base.get(name, 0)
        if lo - cur >= 0 and hi - cur <= 65535:
            return cur
        new = lo
        d = (new - cur) & 0xFFFFFFFF
        for r in regs:
            self.a(f"v_add_u32 v{r}, 0x{d:x}, v{r}")
        self.base[name] = new
        return new

    def run_items(self, items, fillers=(), mid=None, pre=()):
        a = self.a
        fillers = list(fillers)
        nm = sum(len(m) for _, m in items)
        regs = [None] * len(items)
        nxt = 0
        live = 0

        def issue():
            nonlocal nxt, live
            while nxt < len(items) and live < NFR and len(self.lg.q) + len(items[nxt][0]) <= 15:
                b = FR0 + 4 * self.fr
                self.fr = (self.fr + 1) % NFR
                regs[nxt] = b
                for t in items[nxt][0]:
                    a(t.format(f=vr(b, 4), lo=vr(b, 2), hi=vr(b + 2, 2)))
                    self.lg.push(("it", nxt))
                nxt += 1
                live += 1

        for t, tag in pre:
            a(t)
            self.lg.push(tag)
        issue()
        if mid:
            mid()
        done = 0
        fdone = 0
        for i, (rd, mf) in enumerate(items):
            self.lg.wait(("it", i))
            b = regs[i]
            for t in mf:
                a(t.format(f=vr(b, 4)))
                done += 1
                want = len(fillers) * done // nm
                while fdone < want:
                    a(fillers[fdone])
                    fdone += 1
            live -= 1
            issue()
        assert fdone == len(fillers)
        assert not self.lg.q

    def dma(self, voff, s, soff, off, role, tag, nt=False):
        o = f" offset:{off}" if off else ""
        n = " nt" if nt else ""
        self.a(f"buffer_load_dwordx4 v{voff}, {srd(s)}, s{soff} offen{o}{n} lds")
        self.vm[role].push(tag)

    def issue_q(self, t):
        a = self.a
        st = WR + (t % NQST) * QST
        for cp in range(4):
            a(f"s_add_u32 m0, s{sL4k}, {st + cp * 1024}")
            a(f"s_add_u32 s{sT}, s{sWqoff}, {t * 262144 + cp * 128}")
            self.dma(vWq, SWQ, sT, 0, 0, ("q", t))
        a(f"s_add_u32 m0, s{sL1k}, {st + 16384}")
        a(f"s_add_u32 s{sT}, s{sXoff}, {t * 64}")
        self.dma(vX, SX, sT, 0, 0, ("q", t))

    def issue_kv(self, s, slot, srdn, soff_expr):
        a = self.a
        for half in range(2):
            a(f"s_add_u32 m0, s{sL8k}, {slot * SLOT + half * 4096}")
            soff_expr(half * 4096)
            for j in range(4):
                self.dma(vKV[j], srdn, sT, j * 1024, 1, ("kv", s), nt=self.o.kv_nt)

    def issue_wo(self, p, slot):
        a = self.a
        for i in range(8):
            a(f"s_add_u32 m0, s{sL8k}, {slot * SLOT + i * 1024}")
            a(f"s_add_u32 s{sT}, s{sWooff}, {i * 9216 + p * 128}")
            self.dma(vWo, SWO, sT, 0, 0, ("wo", p))

    def prologue(self):
        a = self.a
        a("s_cmp_ge_u32 s2, 256")
        a("s_cbranch_scc1 L_exit")
        a("s_load_dwordx16 s[36:51], s[0:1], 0")
        a("s_load_dwordx8 s[52:59], s[0:1], 64")
        a("s_load_dwordx2 s[60:61], s[0:1], 96")
        a("v_lshrrev_b32 v1, 6, v0")
        a("v_and_b32 v0, 63, v0")
        a(f"v_readfirstlane_b32 s{sW}, v1")
        a(f"s_lshr_b32 s3, s2, 3")
        a(f"s_and_b32 s{sBr}, s3, 1")
        a(f"s_lshr_b32 s{sB}, s3, 2")
        a(f"s_bfe_u32 s3, s3, 0x10001")
        a(f"s_and_b32 s{sHp}, s2, 7")
        a(f"s_lshl_b32 s{sHp}, s{sHp}, 1")
        a(f"s_add_u32 s{sHp}, s{sHp}, s3")
        a(f"s_and_b32 s{sLw}, s{sW}, 3")
        a(f"s_lshr_b32 s{sHH}, s{sW}, 2")
        a(f"s_cmp_ge_u32 s{sW}, 4")
        a(f"s_cselect_b32 s{sRole}, 1, 0")
        a(f"s_lshl_b32 s{sL8k}, s{sLw}, 13")
        a(f"s_lshl_b32 s{sL4k}, s{sLw}, 12")
        a(f"s_lshl_b32 s{sL1k}, s{sLw}, 10")
        a(f"s_mov_b32 s{sC}, {f32hex(128 ** -0.5 * 1.4426950408889634)}")
        T = FR0
        g, i16, rr, ch, t0, t1, row4, c4 = (T + k for k in range(8))
        a(f"v_lshrrev_b32 v{g}, 4, v0")
        a(f"v_and_b32 v{i16}, 15, v0")
        a(f"v_lshrrev_b32 v{rr}, 3, v0")
        a(f"v_and_b32 v{ch}, 7, v0")
        a(f"v_lshrrev_b32 v{row4}, 2, v0")
        a(f"v_and_b32 v{c4}, 3, v0")
        a(f"v_lshlrev_b32 v{t0}, 1, v{g}")
        a(f"v_xor_b32 v{t0}, v{t0}, v{i16}")
        a(f"v_lshlrev_b32 v{t0}, 4, v{t0}")
        a(f"v_lshl_or_b32 v{vKV[0]}, v{g}, 8, v{t0}")
        for j in range(1, 4):
            a(f"v_xor_b32 v{vKV[j]}, {(8 * (j & 1) + (j >> 1)) << 4}, v{vKV[0]}")
        a(f"v_and_b32 v{t0}, 6, v{rr}")
        a(f"v_xor_b32 v{t0}, v{t0}, v{ch}")
        a(f"v_lshlrev_b32 v{t0}, 4, v{t0}")
        a(f"v_and_b32 v{t1}, 4, v{rr}")
        a(f"v_add_u32 v{t1}, v{t1}, v{rr}")
        a(f"v_lshl_or_b32 v{vWq}, v{t1}, 13, v{t0}")
        a(f"v_mul_u32_u24 v{t1}, 1152, v{rr}")
        a(f"v_add_u32 v{vWo}, v{t1}, v{t0}")
        a(f"v_lshrrev_b32 v{t0}, 3, v{row4}")
        a(f"v_lshlrev_b32 v{t0}, 1, v{t0}")
        a(f"v_xor_b32 v{t0}, v{t0}, v{c4}")
        a(f"v_lshlrev_b32 v{t0}, 4, v{t0}")
        a(f"v_mul_u32_u24 v{t1}, 1152, v{row4}")
        a(f"v_add_u32 v{vX}, v{t1}, v{t0}")
        a(f"s_mul_i32 s{sXoff}, s{sB}, 73728")
        a(f"s_mul_i32 s3, s{sLw}, {16 * 1152}")
        a(f"s_add_u32 s{sT2}, s{sXoff}, 0")
        a(f"s_add_u32 s{sXoff}, s{sXoff}, s3")
        a(f"s_and_b32 s3, s{sLw}, 1")
        a(f"s_lshl_b32 s3, s3, 15")
        a(f"s_lshr_b32 s{sT}, s{sLw}, 1")
        a(f"s_lshl_b32 s{sT}, s{sT}, 17")
        a(f"s_add_u32 s3, s3, s{sT}")
        a(f"s_lshl_b32 s{sWqoff}, s{sHp}, 9")
        a(f"s_add_u32 s{sWqoff}, s{sWqoff}, s3")
        a(f"s_mul_i32 s{sWooff}, s{sHp}, {256 * 1152}")
        a(f"s_mul_i32 s3, s{sLw}, {64 * 1152}")
        a(f"s_add_u32 s{sWooff}, s{sWooff}, s3")
        a(f"s_lshl_b32 s3, s{sB}, 4")
        a(f"s_add_u32 s3, s3, s{sHp}")
        a(f"s_lshl_b32 s73, s3, 17")
        a(f"s_add_u32 s73, s73, s{sL8k}")
        a(f"s_lshl_b32 s74, s3, 1")
        a(f"s_lshr_b32 s{sT}, s{sLw}, 1")
        a(f"s_add_u32 s74, s74, s{sT}")
        a(f"s_lshl_b32 s74, s74, 17")
        a(f"s_and_b32 s{sT}, s{sL8k}, 8192")
        a(f"s_add_u32 s74, s74, s{sT}")
        a(f"s_lshl_b32 s{sT}, s{sBr}, 7")
        a(f"s_add_u32 s3, s3, s{sT}")
        a(f"s_mul_i32 s{sStoff}, s3, 73728")
        a(f"s_lshl_b32 s{sT}, s{sW}, 10")
        a(f"s_add_u32 s{sStoff}, s{sStoff}, s{sT}")
        a("s_waitcnt lgkmcnt(0)")
        a(f"s_cmp_eq_u32 s{sBr}, 0")
        a(f"s_cselect_b32 s{sKVoff}, s73, s74")
        for dst, pa, pb in ((SX, 36, 46), (SK, 38, 48), (SV, 40, 50), (SWQ, 42, 52), (SWO, 44, 54)):
            a(f"s_cselect_b64 s[{dst}:{dst + 1}], s[{pa}:{pa + 1}], s[{pb}:{pb + 1}]")
        a(f"s_lshl_b32 s{SK + 2}, 0x1000000, s{sBr}")
        a(f"s_lshr_b32 s{sKVstr}, 32768, s{sBr}")
        a(f"s_mov_b32 s{SV + 2}, s{SK + 2}")
        a(f"s_mov_b32 s{SX + 2}, 589824")
        a(f"s_mov_b32 s{SWQ + 2}, 4718592")
        a(f"s_mov_b32 s{SWO + 2}, 4718592")
        a(f"s_mov_b64 s[{SWS}:{SWS + 1}], s[60:61]")
        a(f"s_mov_b32 s{SWS + 2}, 0x10000000")
        for d in (SX, SK, SV, SWQ, SWO, SWS):
            a(f"s_mov_b32 s{d + 3}, 0x20000")

        def w_first():
            for t in range(NQST):
                self.issue_q(t)

        def kv_first():
            a(f"v_lshlrev_b32 v{t0}, 7, v0")
            a(f"s_add_u32 s{sT}, s{sT2}, s{sL8k}")
            a(f"buffer_load_dword v{vDummy}, v{t0}, {srd(SX)}, s{sT} offen")
            self.vm[1].push("warm")
            a(f"s_add_u32 s{sT}, s{sT}, 32768")
            a(f"buffer_load_dword v{vDummy}, v{t0}, {srd(SX)}, s{sT} offen")
            self.vm[1].push("warm")
            a(f"v_lshlrev_b32 v{t1}, 7, v{i16}")
            a(f"s_lshl_b32 s3, s{sLw}, 11")
            a(f"s_add_u32 s{sT}, s{sT2}, s3")
            a(f"s_add_u32 s{sT}, s{sT}, 65536")
            a(f"buffer_load_dword v{vDummy}, v{t1}, {srd(SX)}, s{sT} offen")
            self.vm[1].push("warm")
            a(f"v_lshlrev_b32 v{t0}, 7, v{c4}")
            a(f"v_lshl_or_b32 v{t0}, v{row4}, 13, v{t0}")
            a(f"s_mul_i32 s{sT}, s{sB}, {72 * 8192}")
            a(f"s_lshl_b32 s3, s{sHp}, 9")
            a(f"s_add_u32 s{sT2}, s{sT}, s3")
            a(f"s_lshl_b32 s3, s{sLw}, 17")
            a(f"s_add_u32 s{sT}, s{sT2}, s3")
            a(f"buffer_load_dword v{vDummy}, v{t0}, {srd(SWQ)}, s{sT} offen")
            self.vm[1].push("warm")
            a(f"v_and_b32 v{t1}, 0x3fff, v{t0}")
            a(f"s_lshl_b32 s3, s{sLw}, 14")
            a(f"s_add_u32 s{sT}, s{sT2}, s3")
            a(f"s_add_u32 s{sT}, s{sT}, {64 * 8192}")
            a(f"buffer_load_dword v{vDummy}, v{t1}, {srd(SWQ)}, s{sT} offen")
            self.vm[1].push("warm")
            a(f"s_mov_b32 s{sT2}, s{sKVoff}")
            for s in range(3):
                self.issue_kv(s, s, SK, lambda e: a(f"s_add_u32 s{sT}, s{sT2}, {e}"))
                a(f"s_add_u32 s{sT2}, s{sT2}, s{sKVstr}")

        self.role_block(0, w_first)
        self.role_block(1, kv_first)

        a(f"s_mul_i32 s3, s{sBr}, s{sHH}")
        a(f"s_lshl_b32 s3, s3, 14")
        fi, fr4 = T + 8, T + 9
        for dst, src in ((fi, i16), (fr4, row4)):
            a(f"v_and_b32 v{t0}, 7, v{src}")
            a(f"v_lshrrev_b32 v{t1}, 3, v{src}")
            a(f"v_lshl_or_b32 v{dst}, v{t0}, 1, v{t1}")
        a(f"v_and_b32 v{t0}, 1, v{g}")
        a(f"v_lshrrev_b32 v{t1}, 1, v{g}")
        a(f"v_lshl_or_b32 v{t0}, v{t0}, 1, v{t1}")
        a(f"v_xor_b32 v{t0}, v{t0}, v{fi}")
        a(f"v_lshlrev_b32 v{t0}, 4, v{t0}")
        a(f"v_lshl_or_b32 v{t0}, v{i16}, 8, v{t0}")
        a(f"v_add_u32 v{vRk[0]}, s3, v{t0}")
        for t in range(1, 4):
            a(f"v_xor_b32 v{vRk[t]}, {t * 64}, v{vRk[0]}")
        a(f"v_lshrrev_b32 v{t0}, 1, v{c4}")
        a(f"v_xor_b32 v{t0}, v{t0}, v{fr4}")
        a(f"v_lshlrev_b32 v{t0}, 4, v{t0}")
        a(f"v_lshl_or_b32 v{t0}, v{row4}, 8, v{t0}")
        a(f"v_and_b32 v{t1}, 1, v{c4}")
        a(f"v_lshl_or_b32 v{t0}, v{t1}, 3, v{t0}")
        a(f"v_add_u32 v{vRv[0]}, s3, v{t0}")
        for d in range(1, 8):
            a(f"v_xor_b32 v{vRv[d]}, {d * 32}, v{vRv[0]}")
        a(f"v_bfe_u32 v{t0}, v{row4}, 1, 2")
        a(f"v_lshlrev_b32 v{t1}, 5, v{t0}")
        a(f"v_lshl_or_b32 v{t1}, v{c4}, 3, v{t1}")
        a(f"v_lshl_or_b32 v{vRo}, v{row4}, 7, v{t1}")
        a(f"s_lshl_b32 s3, s{sLw}, 5")
        a(f"v_xor_b32 v{vRo}, s3, v{vRo}")
        a(f"v_and_b32 v{t0}, 7, v{row4}")
        a(f"v_lshl_or_b32 v{t1}, v{t0}, 7, v{t1}")
        a(f"v_lshrrev_b32 v{t0}, 1, v{g}")
        a(f"v_lshl_or_b32 v{t1}, v{t0}, 13, v{t1}")
        a(f"s_lshl_b32 s3, s{sHH}, 11")
        a(f"s_add_u32 s3, s3, {WR}")
        a(f"v_add_u32 v{vRq[0]}, s3, v{t1}")
        for u in range(1, 4):
            a(f"v_xor_b32 v{vRq[u]}, {u * 32}, v{vRq[0]}")
        a(f"v_lshrrev_b32 v{t0}, 3, v{i16}")
        a(f"v_lshlrev_b32 v{t0}, 1, v{t0}")
        a(f"v_xor_b32 v{t0}, v{t0}, v{g}")
        a(f"v_lshlrev_b32 v{t0}, 4, v{t0}")
        a(f"v_lshl_or_b32 v{t0}, v{i16}, 6, v{t0}")
        a(f"s_add_u32 s3, s{sL1k}, {WR + 16384}")
        a(f"v_add_u32 v{vRx}, s3, v{t0}")
        a(f"v_lshlrev_b32 v{vLin}, 4, v0")
        a(f"v_lshlrev_b32 v{t0}, 6, v{i16}")
        a(f"v_lshl_or_b32 v{vSt}, v{g}, 4, v{t0}")
        if self.o.stamps:
            a(f"v_mov_b32 v{vStamp}, 0")
            a("s_memrealtime s[98:99]")
            a("s_waitcnt lgkmcnt(0)")
            a(f"v_writelane_b32 v{vStamp}, s98, 62")
        self.stamp()

    def qphase(self):
        a = self.a
        for t in range(18):
            self.role_wait(0, ("q", t))
            self.barrier()
            st = (t % NQST) * QST
            items = []
            for m in range(8):
                u, hi = m & 3, m >> 2
                off = st + hi * 1024
                c = "0" if t == 0 else vr(vS + 4 * m, 4)
                items.append((
                    [f"ds_read_b64_tr_b16 {{lo}}, v{vRq[u]} offset:{off}",
                     f"ds_read_b64_tr_b16 {{hi}}, v{vRq[u]} offset:{off + 4096}"],
                    [f"v_mfma_f32_16x16x32_bf16 {vr(vS + 4 * m, 4)}, {{f}}, {vr(vXf, 4)}, {c}"]))
            mid = None
            if t >= 1 and t + NQST - 1 < 18:
                mid = lambda t=t: self.role_block(0, lambda: self.issue_q(t + NQST - 1))
            self.run_items(items, mid=mid,
                           pre=[(f"ds_read_b128 {vr(vXf, 4)}, v{vRx} offset:{st}", ("it", 0))])
        for t in range(4):
            for k in range(4):
                a(f"v_cvt_pk_bf16_f32 v{vQ + 4 * t + k}, v{vS + 8 * t + 2 * k}, v{vS + 8 * t + 2 * k + 1}")
        for t in range(4):
            a(f"v_permlane16_swap_b32 v{vQ + 4 * t}, v{vQ + 4 * t + 2}")
            a(f"v_permlane16_swap_b32 v{vQ + 4 * t + 1}, v{vQ + 4 * t + 3}")

    def max_ops(self, u, first):
        b = vS + 16 * u
        ops = []
        if first:
            ops.append(f"v_max3_f32 v1, v{b}, v{b + 1}, v{b + 2}")
            ops.append(f"v_max_f32 v1, v1, v{b + 3}")
            k = 4
        else:
            k = 0
        while k < 16:
            ops.append(f"v_max3_f32 v1, v1, v{b + k}, v{b + k + 1}")
            k += 2
        return ops

    def p_ops(self, u):
        b = vS + 16 * u
        ops = []
        for k in range(0, 16, 4):
            for j in range(4):
                ops.append(f"v_fma_f32 v{b + k + j}, v{b + k + j}, s{sC}, -v2")
            for j in range(4):
                ops.append(f"v_exp_f32 v{b + k + j}, v{b + k + j}")
        for k in range(8):
            ops.append(f"v_cvt_pk_bf16_f32 v{b + k}, v{b + 2 * k}, v{b + 2 * k + 1}")
        return ops

    def main(self, isB):
        a = self.a
        n = 8 if isB else 4
        upn = 1 if isB else 2
        stride = 16384 if isB else 32768
        reqs = [("kv", s) for s in range(2 * n)] + [("wo", 0), ("wo", 1), ("wo", 2), ("o", 0)] + \
               [("wo", p) for p in range(3, 9)]
        slot_of = {("kv", s): s for s in range(3)}
        nreq = 3
        free = []
        release_next = [3, 4]

        def grant():
            nonlocal nreq
            got = []
            while free and nreq < len(reqs):
                r = reqs[nreq]
                slot_of[r] = free.pop(0)
                got.append(r)
                nreq += 1
            return got

        def issue(got):
            kv = [r for r in got if r[0] == "kv"]
            wo = [r for r in got if r[0] == "wo"]

            def do_kv():
                for (_, s) in kv:
                    sr, i = (SK, s) if s < n else (SV, s - n)
                    self.issue_kv(s, slot_of[("kv", s)], sr,
                                  lambda e, i=i: a(f"s_add_u32 s{sT}, s{sKVoff}, {i * stride + e}"))

            def do_wo():
                for (_, p) in wo:
                    self.issue_wo(p, slot_of[("wo", p)])

            if kv:
                self.role_block(1, do_kv)
            if wo:
                self.role_block(0, do_wo)

        def wo_warm():
            def body():
                a(f"v_lshlrev_b32 v{vX}, 7, v0")
                a(f"s_mul_i32 s{sT2}, s{sHp}, {256 * 1152}")
                a(f"s_mul_i32 s3, s{sB}, 36864")
                a(f"s_add_u32 s{sT2}, s{sT2}, s3")
                a(f"s_add_u32 s{sT}, s{sT2}, s{sL8k}")
                a(f"buffer_load_dword v{vDummy}, v{vX}, {srd(SWO)}, s{sT} offen")
                self.vm[0].push("warm")
                a(f"v_and_b32 v{vX}, 0x3ff, v{vX}")
                a(f"s_add_u32 s{sT}, s{sT2}, s{sL1k}")
                a(f"s_add_u32 s{sT}, s{sT}, 32768")
                a(f"buffer_load_dword v{vDummy}, v{vX}, {srd(SWO)}, s{sT} offen")
                self.vm[0].push("warm")
            self.role_block(0, body)

        warm_at = max(0, 2 * n - 4 - (self.o.wo_warm_step if isB else self.o.wo_warm_step // 2))

        def step_head(role, tag):
            nonlocal release_next
            self.role_wait(role, tag)
            self.barrier()
            free.extend(release_next)
            release_next = [slot_of[tag]]
            return grant()

        for s in range(n):
            got = step_head(1, ("kv", s))
            sb = slot_of[("kv", s)] * SLOT
            cur = self.rebase("k", vRk, sb, sb + SLOT - 1)
            for e in range(upn):
                u = s * upn + e
                items = []
                for kb in range(4):
                    d = vr(vS + 16 * u + 4 * kb, 4)
                    for t in range(4):
                        off = sb - cur + e * 16384 + kb * 4096
                        items.append(([f"ds_read_b128 {{f}}, v{vRk[t]} offset:{off}"],
                                      [f"v_mfma_f32_16x16x32_bf16 {d}, {{f}}, {vr(vQ + 4 * t, 4)}, {'0' if t == 0 else d}"]))
                fill = self.max_ops(u - 1, u == 1) if u >= 1 else []

                def mid(got=got, e=e, s=s):
                    if e == 0:
                        issue(got)
                        if s == warm_at:
                            wo_warm()
                self.run_items(items, fillers=fill, mid=mid)
        for op in self.max_ops(7, False):
            a(op)
        a("v_mov_b32 v2, v1")
        a("v_permlane16_swap_b32 v1, v2")
        a("v_max_f32 v1, v1, v2")
        a("v_mov_b32 v2, v1")
        a("v_permlane32_swap_b32 v1, v2")
        a("v_max_f32 v1, v1, v2")
        a(f"v_mul_f32 v2, s{sC}, v1")
        for k in range(4):
            a(f"v_mov_b32 v{vOnes + k}, 0x3f803f80")
        for op in self.p_ops(0):
            a(op)
        for s in range(n, 2 * n):
            got = step_head(1, ("kv", s))
            sb = slot_of[("kv", s)] * SLOT
            cur = self.rebase("v", vRv, sb, sb + SLOT - 1)
            for e in range(upn):
                u = (s - n) * upn + e
                items = []
                for j in range(2):
                    p = vr(vS + 16 * u + 4 * j, 4)
                    first = (u == 0 and j == 0)
                    for dt in range(8):
                        off = sb - cur + e * 16384 + j * 8192
                        d = vr(vO + 4 * dt, 4)
                        mf = [f"v_mfma_f32_16x16x32_bf16 {d}, {{f}}, {p}, {'0' if first else d}"]
                        if dt == 0:
                            mf.append(f"v_mfma_f32_16x16x32_bf16 {vr(vL, 4)}, {vr(vOnes, 4)}, {p}, {'0' if first else vr(vL, 4)}")
                        items.append(([f"ds_read_b64_tr_b16 {{lo}}, v{vRv[dt]} offset:{off}",
                                       f"ds_read_b64_tr_b16 {{hi}}, v{vRv[dt]} offset:{off + 4096}"], mf))
                fill = self.p_ops(u + 1) if u < 7 else []

                def mid(got=got, e=e, s=s):
                    if e == 0:
                        issue(got)
                        if s == warm_at:
                            wo_warm()
                self.run_items(items, fillers=fill, mid=mid)
        vP = 208
        a(f"v_rcp_f32 v1, v{vL}")
        for k in range(32):
            a(f"v_mul_f32 v{vO + k}, v1, v{vO + k}")
        for k in range(16):
            a(f"v_cvt_pk_bf16_f32 v{vP + k}, v{vO + 2 * k}, v{vO + 2 * k + 1}")
        ob = slot_of[("o", 0)] * SLOT
        a(f"s_lshl_b32 s3, s{sW}, 12")
        a(f"s_add_u32 s3, s3, {ob}")
        a(f"v_add_u32 v1, s3, v{vLin}")
        for t in range(4):
            a(f"ds_write_b128 v1, {vr(vP + 4 * t, 4)} offset:{t * 1024}")
        a(f"s_lshl_b32 s3, s{sHH}, 13")
        a(f"s_add_u32 s3, s3, {ob}")
        a(f"v_add_u32 v2, s3, v{vLin}")
        a("s_waitcnt lgkmcnt(0)")
        vOf = 128
        vAcc, vPk = 192, 224

        def out_ops(p):
            ac, pk = vAcc + 8 * (p & 1), vPk + 4 * (p & 1)
            ops = [f"v_cvt_pk_bf16_f32 v{pk + k}, v{ac + 2 * k}, v{ac + 2 * k + 1}" for k in range(4)]
            ops.append(f"s_add_u32 s{sT2}, s{sStoff}, {p * 8192}")
            ops.append(f"buffer_store_dwordx4 {vr(pk, 4)}, v{vSt}, {srd(SWS)}, s{sT2} offen")
            return ops

        for p in range(9):
            got = step_head(0, ("wo", p))
            if p == 0:
                release_next.append(slot_of[("o", 0)])
                for hd in range(2):
                    for nn in range(2):
                        for t in range(4):
                            if len(self.lg.q) == 15:
                                self.lg.wait(self.lg.q[0])
                            k = (hd * 4 + t) * 2 + nn
                            a(f"ds_read_b128 {vr(vOf + 4 * k, 4)}, v2 offset:{hd * 16384 + nn * 4096 + t * 1024}")
                            self.lg.push(("of", k))
                a("s_waitcnt lgkmcnt(0)")
                self.lg.clear()
            sb = slot_of[("wo", p)] * SLOT
            cur = self.rebase("o", [vRo], sb, sb + SLOT - 1)
            ac = vAcc + 8 * (p & 1)
            items = []
            for k in range(8):
                off = sb - cur + k * 4096
                mf = []
                for nn in range(2):
                    d = vr(ac + 4 * nn, 4)
                    mf.append(f"v_mfma_f32_16x16x32_bf16 {d}, {{f}}, {vr(vOf + 4 * (2 * k + nn), 4)}, {'0' if k == 0 else d}")
                items.append(([f"ds_read_b64_tr_b16 {{lo}}, v{vRo} offset:{off}",
                               f"ds_read_b64_tr_b16 {{hi}}, v{vRo} offset:{off + 2048}"], mf))

            def mid(got=got, p=p):
                issue(got)
                if p >= 1:
                    for op in out_ops(p - 1):
                        a(op)
                    self.vm[0].push("st")
                    self.vm[1].push("st")
            self.run_items(items, mid=mid)
        for op in out_ops(8):
            a(op)
        if self.o.stamps:
            a("s_waitcnt vmcnt(0)")
            self.stamp()
            a("s_memrealtime s[98:99]")
            a("s_waitcnt lgkmcnt(0)")
            a(f"v_writelane_b32 v{vStamp}, s98, 63")
            a(f"s_lshl_b32 s3, s2, 3")
            a(f"s_add_u32 s3, s3, s{sW}")
            a(f"s_lshl_b32 s3, s3, 8")
            a(f"s_add_u32 s3, s3, 0x2000000")
            a(f"v_lshlrev_b32 v1, 2, v0")
            a(f"buffer_store_dword v{vStamp}, v1, {srd(SWS)}, s3 offen")
        a("s_endpgm")

    def kernel1(self):
        a = self.a
        self.prologue()
        self.qphase()
        a(f"s_cmp_eq_u32 s{sBr}, 0")
        a("s_cbranch_scc0 L_branchB")
        snap = (copy.deepcopy(self.vm[0].q), copy.deepcopy(self.vm[1].q), dict(self.base), self.fr, self.nstamp)
        self.main(False)
        a("L_branchB:")
        a("s_nop 7")
        self.vm[0].q, self.vm[1].q, self.base, self.fr, self.nstamp = snap
        self.main(True)
        a("L_exit:")
        a("s_endpgm")


def kernel2():
    a = Asm()
    a("s_cmp_ge_u32 s2, 288")
    a("s_cbranch_scc1 L2_exit")
    a("s_load_dwordx2 s[8:9], s[0:1], 96")
    a("s_load_dwordx2 s[12:13], s[0:1], 80")
    a(f"s_mul_hi_u32 s4, s2, {(2 ** 32 + 17) // 18}")
    a("s_mul_i32 s3, s4, 18")
    a("s_sub_u32 s3, s2, s3")
    a("s_lshr_b32 s5, s3, 1")
    a("s_and_b32 s6, s3, 1")
    a(f"s_mul_i32 s7, s4, {16 * 73728}")
    a("s_lshl_b32 s3, s3, 12")
    a("s_add_u32 s7, s7, s3")
    a("v_lshrrev_b32 v1, 4, v0")
    a("v_bfe_u32 v2, v0, 2, 2")
    a("v_and_b32 v3, 3, v0")
    a("v_lshlrev_b32 v4, 10, v2")
    a("v_lshl_or_b32 v4, v1, 6, v4")
    a("v_lshl_or_b32 v4, v3, 4, v4")
    a("s_mov_b32 s10, 0x10000000")
    a("s_mov_b32 s11, 0x20000")
    a("s_mov_b32 s14, 1179648")
    a("s_mov_b32 s15, 0x20000")
    a("s_waitcnt lgkmcnt(0)")
    for h in range(16):
        a(f"buffer_load_dwordx4 {vr(16 + 4 * h, 4)}, v4, s[8:11], s7 offen")
        if h < 15:
            a("s_add_u32 s7, s7, 73728")
    a("s_and_b32 s3, s4, 7")
    a("s_lshl_b32 s3, s3, 1")
    a("s_add_u32 s3, s3, s6")
    a(f"s_mul_i32 s3, s3, {32 * 2304}")
    a("s_lshr_b32 s4, s4, 3")
    a("s_mul_i32 s4, s4, 1152")
    a("s_add_u32 s3, s3, s4")
    a("s_lshl_b32 s5, s5, 7")
    a("s_add_u32 s3, s3, s5")
    a(f"s_add_u32 s4, s3, {16 * 2304}")
    a("v_mul_u32_u24 v5, 2304, v1")
    a("v_and_b32 v6, 15, v0")
    a("v_lshl_add_u32 v5, v6, 3, v5")
    for h in range(16):
        a(f"s_waitcnt vmcnt({15 - h})")
        for k in range(4):
            s = 16 + 4 * h + k
            if h == 0:
                a(f"v_lshlrev_b32 v{8 + 2 * k}, 16, v{s}")
                a(f"v_and_b32 v{9 + 2 * k}, 0xffff0000, v{s}")
            else:
                a(f"v_lshlrev_b32 v6, 16, v{s}")
                a(f"v_and_b32 v7, 0xffff0000, v{s}")
                a(f"v_add_f32 v{8 + 2 * k}, v{8 + 2 * k}, v6")
                a(f"v_add_f32 v{9 + 2 * k}, v{9 + 2 * k}, v7")
    for k in range(4):
        a(f"v_cvt_pk_bf16_f32 v{16 + k}, v{8 + 2 * k}, v{9 + 2 * k}")
    a("buffer_store_dwordx2 v[16:17], v5, s[12:15], s3 offen")
    a("buffer_store_dwordx2 v[18:19], v5, s[12:15], s4 offen")
    a("L2_exit:")
    a("s_endpgm")
    a.pad()
    return a.text()


def kd(name, vg, sg):
    return f""".amdhsa_kernel {name}
  .amdhsa_next_free_vgpr {vg}
  .amdhsa_next_free_sgpr {sg}
  .amdhsa_accum_offset {(vg + 3) // 4 * 4}
  .amdhsa_group_segment_fixed_size 0
  .amdhsa_kernarg_size 104
  .amdhsa_user_sgpr_count 2
  .amdhsa_user_sgpr_kernarg_segment_ptr 1
  .amdhsa_system_sgpr_workgroup_id_x 1
.end_amdhsa_kernel
"""


def build(opt):
    g = Gen(opt)
    g.kernel1()
    npad = g.a.pad()
    k1, k2 = NAME + "_kernel", "reduce_heads_kernel"
    s = HEADER
    s += f"; @launch kernel={k1} grid=(256,1,1) block=(512,1,1) lds=163840\n"
    s += f"; @launch kernel={k2} grid=(288,1,1) block=(256,1,1) lds=0\n"
    s += '.amdgcn_target "amdgcn-amd-amdhsa--gfx950"\n.text\n'
    s += f".globl {k1}\n.p2align 8\n.type {k1},@function\n{k1}:\n" + g.a.text()
    s += f".globl {k2}\n.p2align 8\n.type {k2},@function\n{k2}:\n" + kernel2()
    s += '.section .rodata,"a"\n.p2align 6\n' + kd(k1, 256, 102) + ".p2align 6\n" + kd(k2, 80, 32)
    return s, npad


if __name__ == "__main__":
    o = Opt()
    out = sys.argv[1]
    for arg in sys.argv[2:]:
        k, v = arg.split("=")
        setattr(o, k, type(getattr(Opt, k))(int(v)) if getattr(Opt, k) is not None else v)
    s, npad = build(o)
    open(out, "w").write(s)
    print("wrote", out, len(s), "bytes; nops inserted", npad)
```

```python
import copy
import struct
import sys

from asmlib import Asm, Fifo

NAME = "concat_heads__gqa_block_cached__mha_block_cached__near_ridge"

HEADER = """; Kernarg layout for this problem (104 bytes, ptrs only, base s[0:1]):
;   offset  32: d_in[4] A_wo  shape=(4096, 576) dtype=bfloat16
;   offset  72: d_in[9] B_wo  shape=(4096, 576) dtype=bfloat16
;   offset  96: d_ws      268435456 bytes workspace
"""


def f32hex(x):
    return "0x%08x" % struct.unpack("<I", struct.pack("<f", x))[0]


class Opt:
    stamps = False
    kv_nt = False
    wo_warm_step = 4
    dump = None
    dbg = False


vKV = [4, 5, 6, 7]
vWq, vX, vWo, vRx = 8, 9, 10, 11
vRq = [12, 13, 14, 15]
vRk = [16, 17, 18, 19]
vRv = list(range(20, 28))
vRo, vLin, vSt, vDummy = 28, 29, 30, 31
vStamp = 3
vQ = 32
vO = 32
vL = 64
vOnes = 68
vXf = 68
FR0, NFR = 72, 14
vS = 128
sW, sLw, sRole, sBr = 4, 5, 6, 7
SX, SK, SV, SWQ, SWO, SWS = 8, 12, 16, 20, 24, 28
sXoff, sWqoff, sKVoff, sWooff = 32, 33, 34, 35
sL8k, sC, sStoff, sT, sT2, sHp, sB, sL4k, sL1k, sKVstr, sHH = 62, 63, 64, 65, 66, 67, 68, 69, 70, 71, 72

SLOT = 32768
WR = 3 * SLOT
QST = 20480
NQST = 3


def vr(b, n):
    return f"v[{b}:{b + n - 1}]"


def srd(b):
    return f"s[{b}:{b + 3}]"


class Gen:
    def __init__(self, opt):
        self.o = opt
        self.a = Asm()
        self.lg = Fifo(self.a, "lgkmcnt", 15)
        self.vm = {0: Fifo(self.a, "vmcnt", 63), 1: Fifo(self.a, "vmcnt", 63)}
        self.fr = 0
        self.base = {}
        self.nstamp = 0

    def role_block(self, role, body):
        a = self.a
        lab = a.label("skip")
        a(f"s_cmp_eq_u32 s{sRole}, {role}")
        a(f"s_cbranch_scc0 {lab}")
        a.begin_cond()
        body()
        a.end_cond()
        a(f"{lab}:")

    def role_wait(self, role, tag):
        if self.vm[role].count_for(tag) is None:
            return
        self.role_block(role, lambda: self.vm[role].wait(tag))

    def stamp(self):
        if not self.o.stamps:
            return
        a = self.a
        assert not self.lg.q
        a("s_memtime s[98:99]")
        a("s_waitcnt lgkmcnt(0)")
        a(f"v_writelane_b32 v{vStamp}, s98, {self.nstamp}")
        self.nstamp += 1

    def barrier(self):
        assert not self.lg.q, self.lg.q
        self.a("s_barrier")
        self.stamp()

    def rebase(self, name, regs, lo, hi):
        cur = self.base.get(name, 0)
        if lo - cur >= 0 and hi - cur <= 65535:
            return cur
        new = lo
        d = (new - cur) & 0xFFFFFFFF
        for r in regs:
            self.a(f"v_add_u32 v{r}, 0x{d:x}, v{r}")
        self.base[name] = new
        return new

    def run_items(self, items, fillers=(), mid=None, pre=()):
        a = self.a
        fillers = list(fillers)
        nm = sum(len(m) for _, m in items)
        regs = [None] * len(items)
        nxt = 0
        live = 0

        def issue():
            nonlocal nxt, live
            while nxt < len(items) and live < NFR and len(self.lg.q) + len(items[nxt][0]) <= 15:
                b = FR0 + 4 * self.fr
                self.fr = (self.fr + 1) % NFR
                regs[nxt] = b
                for t in items[nxt][0]:
                    a(t.format(f=vr(b, 4), lo=vr(b, 2), hi=vr(b + 2, 2)))
                    self.lg.push(("it", nxt))
                nxt += 1
                live += 1

        for t, tag in pre:
            a(t)
            self.lg.push(tag)
        issue()
        if mid:
            mid()
        done = 0
        fdone = 0
        for i, (rd, mf) in enumerate(items):
            self.lg.wait(("it", i))
            b = regs[i]
            for t in mf:
                a(t.format(f=vr(b, 4)))
                done += 1
                want = len(fillers) * done // nm
                while fdone < want:
                    a(fillers[fdone])
                    fdone += 1
            live -= 1
            issue()
        assert fdone == len(fillers)
        assert not self.lg.q

    def dma(self, voff, s, soff, off, role, tag, nt=False):
        o = f" offset:{off}" if off else ""
        n = " nt" if nt else ""
        self.a(f"buffer_load_dwordx4 v{voff}, {srd(s)}, s{soff} offen{o}{n} lds")
        self.vm[role].push(tag)

    def issue_q(self, t):
        a = self.a
        st = WR + (t % NQST) * QST
        for cp in range(4):
            a(f"s_add_u32 m0, s{sL4k}, {st + cp * 1024}")
            a(f"s_add_u32 s{sT}, s{sWqoff}, {t * 262144 + cp * 128}")
            self.dma(vWq, SWQ, sT, 0, 0, ("q", t))
        a(f"s_add_u32 m0, s{sL1k}, {st + 16384}")
        a(f"s_add_u32 s{sT}, s{sXoff}, {t * 64}")
        self.dma(vX, SX, sT, 0, 0, ("q", t))

    def issue_kv(self, s, slot, srdn, soff_expr):
        a = self.a
        for half in range(2):
            a(f"s_add_u32 m0, s{sL8k}, {slot * SLOT + half * 4096}")
            soff_expr(half * 4096)
            for j in range(4):
                self.dma(vKV[j], srdn, sT, j * 1024, 1, ("kv", s), nt=self.o.kv_nt)

    def issue_wo(self, p, slot):
        a = self.a
        for i in range(8):
            a(f"s_add_u32 m0, s{sL8k}, {slot * SLOT + i * 1024}")
            a(f"s_add_u32 s{sT}, s{sWooff}, {i * 9216 + p * 128}")
            self.dma(vWo, SWO, sT, 0, 0, ("wo", p))

    def prologue(self):
        a = self.a
        a("s_cmp_ge_u32 s2, 256")
        a("s_cbranch_scc1 L_exit")
        a("s_load_dwordx16 s[36:51], s[0:1], 0")
        a("s_load_dwordx8 s[52:59], s[0:1], 64")
        a("s_load_dwordx2 s[60:61], s[0:1], 96")
        a("v_lshrrev_b32 v1, 6, v0")
        a("v_and_b32 v0, 63, v0")
        a(f"v_readfirstlane_b32 s{sW}, v1")
        a(f"s_lshr_b32 s3, s2, 3")
        a(f"s_and_b32 s{sBr}, s3, 1")
        a(f"s_lshr_b32 s{sB}, s3, 2")
        a(f"s_bfe_u32 s3, s3, 0x10001")
        a(f"s_and_b32 s{sHp}, s2, 7")
        a(f"s_lshl_b32 s{sHp}, s{sHp}, 1")
        a(f"s_add_u32 s{sHp}, s{sHp}, s3")
        a(f"s_and_b32 s{sLw}, s{sW}, 3")
        a(f"s_lshr_b32 s{sHH}, s{sW}, 2")
        a(f"s_cmp_ge_u32 s{sW}, 4")
        a(f"s_cselect_b32 s{sRole}, 1, 0")
        a(f"s_lshl_b32 s{sL8k}, s{sLw}, 13")
        a(f"s_lshl_b32 s{sL4k}, s{sLw}, 12")
        a(f"s_lshl_b32 s{sL1k}, s{sLw}, 10")
        a(f"s_mov_b32 s{sC}, {f32hex(128 ** -0.5 * 1.4426950408889634)}")
        T = FR0
        g, i16, rr, ch, t0, t1, row4, c4 = (T + k for k in range(8))
        a(f"v_lshrrev_b32 v{g}, 4, v0")
        a(f"v_and_b32 v{i16}, 15, v0")
        a(f"v_lshrrev_b32 v{rr}, 3, v0")
        a(f"v_and_b32 v{ch}, 7, v0")
        a(f"v_lshrrev_b32 v{row4}, 2, v0")
        a(f"v_and_b32 v{c4}, 3, v0")
        a(f"v_lshlrev_b32 v{t0}, 1, v{g}")
        a(f"v_xor_b32 v{t0}, v{t0}, v{i16}")
        a(f"v_lshlrev_b32 v{t0}, 4, v{t0}")
        a(f"v_lshl_or_b32 v{vKV[0]}, v{g}, 8, v{t0}")
        for j in range(1, 4):
            a(f"v_xor_b32 v{vKV[j]}, {(8 * (j & 1) + (j >> 1)) << 4}, v{vKV[0]}")
        a(f"v_and_b32 v{t0}, 6, v{rr}")
        a(f"v_xor_b32 v{t0}, v{t0}, v{ch}")
        a(f"v_lshlrev_b32 v{t0}, 4, v{t0}")
        a(f"v_and_b32 v{t1}, 4, v{rr}")
        a(f"v_add_u32 v{t1}, v{t1}, v{rr}")
        a(f"v_lshl_or_b32 v{vWq}, v{t1}, 13, v{t0}")
        a(f"v_mul_u32_u24 v{t1}, 1152, v{rr}")
        a(f"v_add_u32 v{vWo}, v{t1}, v{t0}")
        a(f"v_lshrrev_b32 v{t0}, 3, v{row4}")
        a(f"v_lshlrev_b32 v{t0}, 1, v{t0}")
        a(f"v_xor_b32 v{t0}, v{t0}, v{c4}")
        a(f"v_lshlrev_b32 v{t0}, 4, v{t0}")
        a(f"v_mul_u32_u24 v{t1}, 1152, v{row4}")
        a(f"v_add_u32 v{vX}, v{t1}, v{t0}")
        a(f"s_mul_i32 s{sXoff}, s{sB}, 73728")
        a(f"s_mul_i32 s3, s{sLw}, {16 * 1152}")
        a(f"s_add_u32 s{sT2}, s{sXoff}, 0")
        a(f"s_add_u32 s{sXoff}, s{sXoff}, s3")
        a(f"s_and_b32 s3, s{sLw}, 1")
        a(f"s_lshl_b32 s3, s3, 15")
        a(f"s_lshr_b32 s{sT}, s{sLw}, 1")
        a(f"s_lshl_b32 s{sT}, s{sT}, 17")
        a(f"s_add_u32 s3, s3, s{sT}")
        a(f"s_lshl_b32 s{sWqoff}, s{sHp}, 9")
        a(f"s_add_u32 s{sWqoff}, s{sWqoff}, s3")
        a(f"s_mul_i32 s{sWooff}, s{sHp}, {256 * 1152}")
        a(f"s_mul_i32 s3, s{sLw}, {64 * 1152}")
        a(f"s_add_u32 s{sWooff}, s{sWooff}, s3")
        a(f"s_lshl_b32 s3, s{sB}, 4")
        a(f"s_add_u32 s3, s3, s{sHp}")
        a(f"s_lshl_b32 s73, s3, 17")
        a(f"s_add_u32 s73, s73, s{sL8k}")
        a(f"s_lshl_b32 s74, s3, 1")
        a(f"s_lshr_b32 s{sT}, s{sLw}, 1")
        a(f"s_add_u32 s74, s74, s{sT}")
        a(f"s_lshl_b32 s74, s74, 17")
        a(f"s_and_b32 s{sT}, s{sL8k}, 8192")
        a(f"s_add_u32 s74, s74, s{sT}")
        a(f"s_lshl_b32 s{sT}, s{sBr}, 7")
        a(f"s_add_u32 s3, s3, s{sT}")
        a(f"s_mul_i32 s{sStoff}, s3, 73728")
        a(f"s_lshl_b32 s{sT}, s{sW}, 10")
        a(f"s_add_u32 s{sStoff}, s{sStoff}, s{sT}")
        a("s_waitcnt lgkmcnt(0)")
        a(f"s_cmp_eq_u32 s{sBr}, 0")
        a(f"s_cselect_b32 s{sKVoff}, s73, s74")
        for dst, pa, pb in ((SX, 36, 46), (SK, 38, 48), (SV, 40, 50), (SWQ, 42, 52), (SWO, 44, 54)):
            a(f"s_cselect_b64 s[{dst}:{dst + 1}], s[{pa}:{pa + 1}], s[{pb}:{pb + 1}]")
        a(f"s_lshl_b32 s{SK + 2}, 0x1000000, s{sBr}")
        a(f"s_lshr_b32 s{sKVstr}, 32768, s{sBr}")
        a(f"s_mov_b32 s{SV + 2}, s{SK + 2}")
        a(f"s_mov_b32 s{SX + 2}, 589824")
        a(f"s_mov_b32 s{SWQ + 2}, 4718592")
        a(f"s_mov_b32 s{SWO + 2}, 4718592")
        a(f"s_mov_b64 s[{SWS}:{SWS + 1}], s[60:61]")
        a(f"s_mov_b32 s{SWS + 2}, 0x10000000")
        for d in (SX, SK, SV, SWQ, SWO, SWS):
            a(f"s_mov_b32 s{d + 3}, 0x20000")

        def w_first():
            for t in range(NQST):
                self.issue_q(t)

        def kv_first():
            a(f"v_lshlrev_b32 v{t0}, 7, v0")
            a(f"s_add_u32 s{sT}, s{sT2}, s{sL8k}")
            a(f"buffer_load_dword v{vDummy}, v{t0}, {srd(SX)}, s{sT} offen")
            self.vm[1].push("warm")
            a(f"s_add_u32 s{sT}, s{sT}, 32768")
            a(f"buffer_load_dword v{vDummy}, v{t0}, {srd(SX)}, s{sT} offen")
            self.vm[1].push("warm")
            a(f"v_lshlrev_b32 v{t1}, 7, v{i16}")
            a(f"s_lshl_b32 s3, s{sLw}, 11")
            a(f"s_add_u32 s{sT}, s{sT2}, s3")
            a(f"s_add_u32 s{sT}, s{sT}, 65536")
            a(f"buffer_load_dword v{vDummy}, v{t1}, {srd(SX)}, s{sT} offen")
            self.vm[1].push("warm")
            a(f"v_lshlrev_b32 v{t0}, 7, v{c4}")
            a(f"v_lshl_or_b32 v{t0}, v{row4}, 13, v{t0}")
            a(f"s_mul_i32 s{sT}, s{sB}, {72 * 8192}")
            a(f"s_lshl_b32 s3, s{sHp}, 9")
            a(f"s_add_u32 s{sT2}, s{sT}, s3")
            a(f"s_lshl_b32 s3, s{sLw}, 17")
            a(f"s_add_u32 s{sT}, s{sT2}, s3")
            a(f"buffer_load_dword v{vDummy}, v{t0}, {srd(SWQ)}, s{sT} offen")
            self.vm[1].push("warm")
            a(f"v_and_b32 v{t1}, 0x3fff, v{t0}")
            a(f"s_lshl_b32 s3, s{sLw}, 14")
            a(f"s_add_u32 s{sT}, s{sT2}, s3")
            a(f"s_add_u32 s{sT}, s{sT}, {64 * 8192}")
            a(f"buffer_load_dword v{vDummy}, v{t1}, {srd(SWQ)}, s{sT} offen")
            self.vm[1].push("warm")
            a(f"s_mov_b32 s{sT2}, s{sKVoff}")
            for s in range(3):
                self.issue_kv(s, s, SK, lambda e: a(f"s_add_u32 s{sT}, s{sT2}, {e}"))
                a(f"s_add_u32 s{sT2}, s{sT2}, s{sKVstr}")

        self.role_block(0, w_first)
        self.role_block(1, kv_first)

        a(f"s_mul_i32 s3, s{sBr}, s{sHH}")
        a(f"s_lshl_b32 s3, s3, 14")
        fi, fr4 = T + 8, T + 9
        for dst, src in ((fi, i16), (fr4, row4)):
            a(f"v_and_b32 v{t0}, 7, v{src}")
            a(f"v_lshrrev_b32 v{t1}, 3, v{src}")
            a(f"v_lshl_or_b32 v{dst}, v{t0}, 1, v{t1}")
        a(f"v_and_b32 v{t0}, 1, v{g}")
        a(f"v_lshrrev_b32 v{t1}, 1, v{g}")
        a(f"v_lshl_or_b32 v{t0}, v{t0}, 1, v{t1}")
        a(f"v_xor_b32 v{t0}, v{t0}, v{fi}")
        a(f"v_lshlrev_b32 v{t0}, 4, v{t0}")
        a(f"v_lshl_or_b32 v{t0}, v{i16}, 8, v{t0}")
        a(f"v_add_u32 v{vRk[0]}, s3, v{t0}")
        for t in range(1, 4):
            a(f"v_xor_b32 v{vRk[t]}, {t * 64}, v{vRk[0]}")
        a(f"v_lshrrev_b32 v{t0}, 1, v{c4}")
        a(f"v_xor_b32 v{t0}, v{t0}, v{fr4}")
        a(f"v_lshlrev_b32 v{t0}, 4, v{t0}")
        a(f"v_lshl_or_b32 v{t0}, v{row4}, 8, v{t0}")
        a(f"v_and_b32 v{t1}, 1, v{c4}")
        a(f"v_lshl_or_b32 v{t0}, v{t1}, 3, v{t0}")
        a(f"v_add_u32 v{vRv[0]}, s3, v{t0}")
        for d in range(1, 8):
            a(f"v_xor_b32 v{vRv[d]}, {d * 32}, v{vRv[0]}")
        a(f"v_bfe_u32 v{t0}, v{row4}, 1, 2")
        a(f"v_lshlrev_b32 v{t1}, 5, v{t0}")
        a(f"v_lshl_or_b32 v{t1}, v{c4}, 3, v{t1}")
        a(f"v_lshl_or_b32 v{vRo}, v{row4}, 7, v{t1}")
        a(f"s_lshl_b32 s3, s{sLw}, 5")
        a(f"v_xor_b32 v{vRo}, s3, v{vRo}")
        a(f"v_and_b32 v{t0}, 7, v{row4}")
        a(f"v_lshl_or_b32 v{t1}, v{t0}, 7, v{t1}")
        a(f"v_lshrrev_b32 v{t0}, 1, v{g}")
        a(f"v_lshl_or_b32 v{t1}, v{t0}, 13, v{t1}")
        a(f"s_lshl_b32 s3, s{sHH}, 11")
        a(f"s_add_u32 s3, s3, {WR}")
        a(f"v_add_u32 v{vRq[0]}, s3, v{t1}")
        for u in range(1, 4):
            a(f"v_xor_b32 v{vRq[u]}, {u * 32}, v{vRq[0]}")
        a(f"v_lshrrev_b32 v{t0}, 3, v{i16}")
        a(f"v_lshlrev_b32 v{t0}, 1, v{t0}")
        a(f"v_xor_b32 v{t0}, v{t0}, v{g}")
        a(f"v_lshlrev_b32 v{t0}, 4, v{t0}")
        a(f"v_lshl_or_b32 v{t0}, v{i16}, 6, v{t0}")
        a(f"s_add_u32 s3, s{sL1k}, {WR + 16384}")
        a(f"v_add_u32 v{vRx}, s3, v{t0}")
        a(f"v_lshlrev_b32 v{vLin}, 4, v0")
        a(f"v_lshlrev_b32 v{t0}, 6, v{i16}")
        a(f"v_lshl_or_b32 v{vSt}, v{g}, 4, v{t0}")
        if self.o.stamps:
            a(f"v_mov_b32 v{vStamp}, 0")
            a("s_memrealtime s[98:99]")
            a("s_waitcnt lgkmcnt(0)")
            a(f"v_writelane_b32 v{vStamp}, s98, 62")
        self.stamp()

    def qphase(self):
        a = self.a
        for t in range(18):
            self.role_wait(0, ("q", t))
            self.barrier()
            st = (t % NQST) * QST
            items = []
            for m in range(8):
                u, hi = m & 3, m >> 2
                off = st + hi * 1024
                c = "0" if t == 0 else vr(vS + 4 * m, 4)
                items.append((
                    [f"ds_read_b64_tr_b16 {{lo}}, v{vRq[u]} offset:{off}",
                     f"ds_read_b64_tr_b16 {{hi}}, v{vRq[u]} offset:{off + 4096}"],
                    [f"v_mfma_f32_16x16x32_bf16 {vr(vS + 4 * m, 4)}, {{f}}, {vr(vXf, 4)}, {c}"]))
            mid = None
            if t >= 1 and t + NQST - 1 < 18:
                mid = lambda t=t: self.role_block(0, lambda: self.issue_q(t + NQST - 1))
            self.run_items(items, mid=mid,
                           pre=[(f"ds_read_b128 {vr(vXf, 4)}, v{vRx} offset:{st}", ("it", 0))])
        for t in range(4):
            for k in range(4):
                a(f"v_cvt_pk_bf16_f32 v{vQ + 4 * t + k}, v{vS + 8 * t + 2 * k}, v{vS + 8 * t + 2 * k + 1}")
        for t in range(4):
            a(f"v_permlane16_swap_b32 v{vQ + 4 * t}, v{vQ + 4 * t + 2}")
            a(f"v_permlane16_swap_b32 v{vQ + 4 * t + 1}, v{vQ + 4 * t + 3}")

    def max_ops(self, u, first):
        b = vS + 16 * u
        ops = []
        if first:
            ops.append(f"v_max3_f32 v1, v{b}, v{b + 1}, v{b + 2}")
            ops.append(f"v_max_f32 v1, v1, v{b + 3}")
            k = 4
        else:
            k = 0
        while k < 16:
            ops.append(f"v_max3_f32 v1, v1, v{b + k}, v{b + k + 1}")
            k += 2
        return ops

    def p_ops(self, u):
        b = vS + 16 * u
        ops = []
        for k in range(0, 16, 4):
            for j in range(4):
                ops.append(f"v_fma_f32 v{b + k + j}, v{b + k + j}, s{sC}, -v2")
            for j in range(4):
                ops.append(f"v_exp_f32 v{b + k + j}, v{b + k + j}")
        for k in range(8):
            ops.append(f"v_cvt_pk_bf16_f32 v{b + k}, v{b + 2 * k}, v{b + 2 * k + 1}")
        return ops

    def main(self, isB):
        a = self.a
        n = 8 if isB else 4
        upn = 1 if isB else 2
        stride = 16384 if isB else 32768
        reqs = [("kv", s) for s in range(2 * n)] + [("wo", 0), ("wo", 1), ("wo", 2), ("o", 0)] + \
               [("wo", p) for p in range(3, 9)]
        slot_of = {("kv", s): s for s in range(3)}
        nreq = 3
        free = []
        release_next = [3, 4]

        def grant():
            nonlocal nreq
            got = []
            while free and nreq < len(reqs):
                r = reqs[nreq]
                slot_of[r] = free.pop(0)
                got.append(r)
                nreq += 1
            return got

        def issue(got):
            kv = [r for r in got if r[0] == "kv"]
            wo = [r for r in got if r[0] == "wo"]

            def do_kv():
                for (_, s) in kv:
                    sr, i = (SK, s) if s < n else (SV, s - n)
                    self.issue_kv(s, slot_of[("kv", s)], sr,
                                  lambda e, i=i: a(f"s_add_u32 s{sT}, s{sKVoff}, {i * stride + e}"))

            def do_wo():
                for (_, p) in wo:
                    self.issue_wo(p, slot_of[("wo", p)])

            if kv:
                self.role_block(1, do_kv)
            if wo:
                self.role_block(0, do_wo)

        def wo_warm():
            def body():
                a(f"v_lshlrev_b32 v{vX}, 7, v0")
                a(f"s_mul_i32 s{sT2}, s{sHp}, {256 * 1152}")
                a(f"s_mul_i32 s3, s{sB}, 36864")
                a(f"s_add_u32 s{sT2}, s{sT2}, s3")
                a(f"s_add_u32 s{sT}, s{sT2}, s{sL8k}")
                a(f"buffer_load_dword v{vDummy}, v{vX}, {srd(SWO)}, s{sT} offen")
                self.vm[0].push("warm")
                a(f"v_and_b32 v{vX}, 0x3ff, v{vX}")
                a(f"s_add_u32 s{sT}, s{sT2}, s{sL1k}")
                a(f"s_add_u32 s{sT}, s{sT}, 32768")
                a(f"buffer_load_dword v{vDummy}, v{vX}, {srd(SWO)}, s{sT} offen")
                self.vm[0].push("warm")
            self.role_block(0, body)

        warm_at = max(0, 2 * n - 4 - (self.o.wo_warm_step if isB else self.o.wo_warm_step // 2))

        def step_head(role, tag):
            nonlocal release_next
            self.role_wait(role, tag)
            self.barrier()
            free.extend(release_next)
            release_next = [slot_of[tag]]
            return grant()

        for s in range(n):
            got = step_head(1, ("kv", s))
            sb = slot_of[("kv", s)] * SLOT
            cur = self.rebase("k", vRk, sb, sb + SLOT - 1)
            for e in range(upn):
                u = s * upn + e
                items = []
                for kb in range(4):
                    d = vr(vS + 16 * u + 4 * kb, 4)
                    for t in range(4):
                        off = sb - cur + e * 16384 + kb * 4096
                        items.append(([f"ds_read_b128 {{f}}, v{vRk[t]} offset:{off}"],
                                      [f"v_mfma_f32_16x16x32_bf16 {d}, {{f}}, {vr(vQ + 4 * t, 4)}, {'0' if t == 0 else d}"]))
                fill = self.max_ops(u - 1, u == 1) if u >= 1 else []

                def mid(got=got, e=e, s=s):
                    if e == 0:
                        issue(got)
                        if s == warm_at:
                            wo_warm()
                self.run_items(items, fillers=fill, mid=mid)
        for op in self.max_ops(7, False):
            a(op)
        a("v_mov_b32 v2, v1")
        a("v_permlane16_swap_b32 v1, v2")
        a("v_max_f32 v1, v1, v2")
        a("v_mov_b32 v2, v1")
        a("v_permlane32_swap_b32 v1, v2")
        a("v_max_f32 v1, v1, v2")
        a(f"v_mul_f32 v2, s{sC}, v1")
        for k in range(4):
            a(f"v_mov_b32 v{vOnes + k}, 0x3f803f80")
        for op in self.p_ops(0):
            a(op)
        for s in range(n, 2 * n):
            got = step_head(1, ("kv", s))
            sb = slot_of[("kv", s)] * SLOT
            cur = self.rebase("v", vRv, sb, sb + SLOT - 1)
            for e in range(upn):
                u = (s - n) * upn + e
                items = []
                for j in range(2):
                    p = vr(vS + 16 * u + 4 * j, 4)
                    first = (u == 0 and j == 0)
                    for dt in range(8):
                        off = sb - cur + e * 16384 + j * 8192
                        d = vr(vO + 4 * dt, 4)
                        mf = [f"v_mfma_f32_16x16x32_bf16 {d}, {{f}}, {p}, {'0' if first else d}"]
                        if dt == 0:
                            mf.append(f"v_mfma_f32_16x16x32_bf16 {vr(vL, 4)}, {vr(vOnes, 4)}, {p}, {'0' if first else vr(vL, 4)}")
                        items.append(([f"ds_read_b64_tr_b16 {{lo}}, v{vRv[dt]} offset:{off}",
                                       f"ds_read_b64_tr_b16 {{hi}}, v{vRv[dt]} offset:{off + 4096}"], mf))
                fill = self.p_ops(u + 1) if u < 7 else []

                def mid(got=got, e=e, s=s):
                    if e == 0:
                        issue(got)
                        if s == warm_at:
                            wo_warm()
                self.run_items(items, fillers=fill, mid=mid)
        vP = 208
        a(f"v_rcp_f32 v1, v{vL}")
        for k in range(32):
            a(f"v_mul_f32 v{vO + k}, v1, v{vO + k}")
        for k in range(16):
            a(f"v_cvt_pk_bf16_f32 v{vP + k}, v{vO + 2 * k}, v{vO + 2 * k + 1}")
        ob = slot_of[("o", 0)] * SLOT
        a(f"s_lshl_b32 s3, s{sW}, 12")
        a(f"s_add_u32 s3, s3, {ob}")
        a(f"v_add_u32 v1, s3, v{vLin}")
        for t in range(4):
            a(f"ds_write_b128 v1, {vr(vP + 4 * t, 4)} offset:{t * 1024}")
        a(f"s_lshl_b32 s3, s{sHH}, 13")
        a(f"s_add_u32 s3, s3, {ob}")
        a(f"v_add_u32 v2, s3, v{vLin}")
        a("s_waitcnt lgkmcnt(0)")
        vOf = 128
        vAcc, vPk = 192, 224

        def out_ops(p):
            ac, pk = vAcc + 8 * (p & 1), vPk + 4 * (p & 1)
            ops = [f"v_cvt_pk_bf16_f32 v{pk + k}, v{ac + 2 * k}, v{ac + 2 * k + 1}" for k in range(4)]
            ops.append(f"s_add_u32 s{sT2}, s{sStoff}, {p * 8192}")
            ops.append(f"buffer_store_dwordx4 {vr(pk, 4)}, v{vSt}, {srd(SWS)}, s{sT2} offen")
            return ops

        for p in range(9):
            got = step_head(0, ("wo", p))
            if p == 0:
                release_next.append(slot_of[("o", 0)])
                for hd in range(2):
                    for nn in range(2):
                        for t in range(4):
                            if len(self.lg.q) == 15:
                                self.lg.wait(self.lg.q[0])
                            k = (hd * 4 + t) * 2 + nn
                            a(f"ds_read_b128 {vr(vOf + 4 * k, 4)}, v2 offset:{hd * 16384 + nn * 4096 + t * 1024}")
                            self.lg.push(("of", k))
                a("s_waitcnt lgkmcnt(0)")
                self.lg.clear()
            sb = slot_of[("wo", p)] * SLOT
            cur = self.rebase("o", [vRo], sb, sb + SLOT - 1)
            ac = vAcc + 8 * (p & 1)
            items = []
            for k in range(8):
                off = sb - cur + k * 4096
                mf = []
                for nn in range(2):
                    d = vr(ac + 4 * nn, 4)
                    mf.append(f"v_mfma_f32_16x16x32_bf16 {d}, {{f}}, {vr(vOf + 4 * (2 * k + nn), 4)}, {'0' if k == 0 else d}")
                items.append(([f"ds_read_b64_tr_b16 {{lo}}, v{vRo} offset:{off}",
                               f"ds_read_b64_tr_b16 {{hi}}, v{vRo} offset:{off + 2048}"], mf))

            def mid(got=got, p=p):
                issue(got)
                if p >= 1:
                    for op in out_ops(p - 1):
                        a(op)
                    self.vm[0].push("st")
                    self.vm[1].push("st")
            self.run_items(items, mid=mid)
        for op in out_ops(8):
            a(op)
        if self.o.stamps:
            a("s_waitcnt vmcnt(0)")
            self.stamp()
            a("s_memrealtime s[98:99]")
            a("s_waitcnt lgkmcnt(0)")
            a(f"v_writelane_b32 v{vStamp}, s98, 63")
            a(f"s_lshl_b32 s3, s2, 3")
            a(f"s_add_u32 s3, s3, s{sW}")
            a(f"s_lshl_b32 s3, s3, 8")
            a(f"s_add_u32 s3, s3, 0x2000000")
            a(f"v_lshlrev_b32 v1, 2, v0")
            a(f"buffer_store_dword v{vStamp}, v1, {srd(SWS)}, s3 offen")
            if self.o.dbg and isB:
                lab = a.label("dbg")
                a("s_cmp_eq_u32 s2, 8")
                a(f"s_cbranch_scc0 {lab}")
                a(f"s_cmp_eq_u32 s{sW}, 0")
                a(f"s_cbranch_scc0 {lab}")
                a("s_mov_b64 s[76:77], s[58:59]")
                a("s_mov_b32 s78, 256")
                a("s_mov_b32 s79, 0x20000")
                a("v_mov_b32 v2, 0")
                a(f"v_readlane_b32 s80, v{vStamp}, 0")
                for k, idx in enumerate([1, 3, 5, 19, 21, 23, 25, 27, 29, 31, 33, 35, 39, 44]):
                    a(f"v_readlane_b32 s81, v{vStamp}, {idx}")
                    a("s_sub_u32 s81, s81, s80")
                    a(f"v_writelane_b32 v2, s81, {k}")
                a(f"v_readlane_b32 s80, v{vStamp}, 62")
                a(f"v_readlane_b32 s81, v{vStamp}, 63")
                a("s_sub_u32 s81, s81, s80")
                a(f"v_writelane_b32 v2, s81, 15")
                a("buffer_store_dword v2, v1, s[76:79], 0 offen")
                a(f"{lab}:")
        a("s_endpgm")

    def kernel1(self):
        a = self.a
        self.prologue()
        self.qphase()
        a(f"s_cmp_eq_u32 s{sBr}, 0")
        a("s_cbranch_scc0 L_branchB")
        snap = (copy.deepcopy(self.vm[0].q), copy.deepcopy(self.vm[1].q), dict(self.base), self.fr, self.nstamp)
        self.main(False)
        a("L_branchB:")
        a("s_nop 7")
        self.vm[0].q, self.vm[1].q, self.base, self.fr, self.nstamp = snap
        self.main(True)
        a("L_exit:")
        a("s_endpgm")


def kernel2():
    a = Asm()
    a("s_cmp_ge_u32 s2, 288")
    a("s_cbranch_scc1 L2_exit")
    a("s_load_dwordx2 s[8:9], s[0:1], 96")
    a("s_load_dwordx2 s[12:13], s[0:1], 80")
    a(f"s_mul_hi_u32 s4, s2, {(2 ** 32 + 17) // 18}")
    a("s_mul_i32 s3, s4, 18")
    a("s_sub_u32 s3, s2, s3")
    a("s_lshr_b32 s5, s3, 1")
    a("s_and_b32 s6, s3, 1")
    a(f"s_mul_i32 s7, s4, {16 * 73728}")
    a("s_lshl_b32 s3, s3, 12")
    a("s_add_u32 s7, s7, s3")
    a("v_lshrrev_b32 v1, 4, v0")
    a("v_bfe_u32 v2, v0, 2, 2")
    a("v_and_b32 v3, 3, v0")
    a("v_lshlrev_b32 v4, 10, v2")
    a("v_lshl_or_b32 v4, v1, 6, v4")
    a("v_lshl_or_b32 v4, v3, 4, v4")
    a("s_mov_b32 s10, 0x10000000")
    a("s_mov_b32 s11, 0x20000")
    a("s_mov_b32 s14, 1179648")
    a("s_mov_b32 s15, 0x20000")
    a("s_waitcnt lgkmcnt(0)")
    for h in range(16):
        a(f"buffer_load_dwordx4 {vr(16 + 4 * h, 4)}, v4, s[8:11], s7 offen")
        if h < 15:
            a("s_add_u32 s7, s7, 73728")
    a("s_and_b32 s3, s4, 7")
    a("s_lshl_b32 s3, s3, 1")
    a("s_add_u32 s3, s3, s6")
    a(f"s_mul_i32 s3, s3, {32 * 2304}")
    a("s_lshr_b32 s4, s4, 3")
    a("s_mul_i32 s4, s4, 1152")
    a("s_add_u32 s3, s3, s4")
    a("s_lshl_b32 s5, s5, 7")
    a("s_add_u32 s3, s3, s5")
    a(f"s_add_u32 s4, s3, {16 * 2304}")
    a("v_mul_u32_u24 v5, 2304, v1")
    a("v_and_b32 v6, 15, v0")
    a("v_lshl_add_u32 v5, v6, 3, v5")
    for h in range(16):
        a(f"s_waitcnt vmcnt({15 - h})")
        for k in range(4):
            s = 16 + 4 * h + k
            if h == 0:
                a(f"v_lshlrev_b32 v{8 + 2 * k}, 16, v{s}")
                a(f"v_and_b32 v{9 + 2 * k}, 0xffff0000, v{s}")
            else:
                a(f"v_lshlrev_b32 v6, 16, v{s}")
                a(f"v_and_b32 v7, 0xffff0000, v{s}")
                a(f"v_add_f32 v{8 + 2 * k}, v{8 + 2 * k}, v6")
                a(f"v_add_f32 v{9 + 2 * k}, v{9 + 2 * k}, v7")
    for k in range(4):
        a(f"v_cvt_pk_bf16_f32 v{16 + k}, v{8 + 2 * k}, v{9 + 2 * k}")
    a("buffer_store_dwordx2 v[16:17], v5, s[12:15], s3 offen")
    a("buffer_store_dwordx2 v[18:19], v5, s[12:15], s4 offen")
    a("L2_exit:")
    a("s_endpgm")
    a.pad()
    return a.text()


def kd(name, vg, sg):
    return f""".amdhsa_kernel {name}
  .amdhsa_next_free_vgpr {vg}
  .amdhsa_next_free_sgpr {sg}
  .amdhsa_accum_offset {(vg + 3) // 4 * 4}
  .amdhsa_group_segment_fixed_size 0
  .amdhsa_kernarg_size 104
  .amdhsa_user_sgpr_count 2
  .amdhsa_user_sgpr_kernarg_segment_ptr 1
  .amdhsa_system_sgpr_workgroup_id_x 1
.end_amdhsa_kernel
"""


def build(opt):
    g = Gen(opt)
    g.kernel1()
    npad = g.a.pad()
    k1, k2 = NAME + "_kernel", "reduce_heads_kernel"
    s = HEADER
    s += f"; @launch kernel={k1} grid=(256,1,1) block=(512,1,1) lds=163840\n"
    s += f"; @launch kernel={k2} grid=(288,1,1) block=(256,1,1) lds=0\n"
    s += '.amdgcn_target "amdgcn-amd-amdhsa--gfx950"\n.text\n'
    s += f".globl {k1}\n.p2align 8\n.type {k1},@function\n{k1}:\n" + g.a.text()
    s += f".globl {k2}\n.p2align 8\n.type {k2},@function\n{k2}:\n" + kernel2()
    s += '.section .rodata,"a"\n.p2align 6\n' + kd(k1, 256, 102) + ".p2align 6\n" + kd(k2, 80, 32)
    return s, npad


if __name__ == "__main__":
    o = Opt()
    out = sys.argv[1]
    for arg in sys.argv[2:]:
        k, v = arg.split("=")
        setattr(o, k, type(getattr(Opt, k))(int(v)) if getattr(Opt, k) is not None else v)
    s, npad = build(o)
    open(out, "w").write(s)
    print("wrote", out, len(s), "bytes; nops inserted", npad)
```

```python
import copy
import struct
import sys

from asmlib import Asm, Fifo

NAME = "concat_heads__gqa_block_cached__mha_block_cached__near_ridge"

HEADER = """; Kernarg layout for this problem (104 bytes, ptrs only, base s[0:1]):
;   offset  32: d_in[4] A_wo  shape=(4096, 576) dtype=bfloat16
;   offset  72: d_in[9] B_wo  shape=(4096, 576) dtype=bfloat16
;   offset  96: d_ws      268435456 bytes workspace
"""


def f32hex(x):
    return "0x%08x" % struct.unpack("<I", struct.pack("<f", x))[0]


class Opt:
    stamps = False
    kv_nt = False
    wo_warm_step = 4
    dump = None
    dbg = False


vKV = [4, 5, 6, 7]
vWq, vX, vWo, vRx = 8, 9, 10, 11
vRq = [12, 13, 14, 15]
vRk = [16, 17, 18, 19]
vRv = list(range(20, 28))
vRo, vLin, vSt, vDummy = 28, 29, 30, 31
vStamp = 3
vQ = 32
vO = 32
vL = 64
vOnes = 68
vXf = 68
FR0, NFR = 72, 14
vS = 128
sW, sLw, sRole, sBr = 4, 5, 6, 7
SX, SK, SV, SWQ, SWO, SWS = 8, 12, 16, 20, 24, 28
sXoff, sWqoff, sKVoff, sWooff = 32, 33, 34, 35
sL8k, sC, sStoff, sT, sT2, sHp, sB, sL4k, sL1k, sKVstr, sHH = 62, 63, 64, 65, 66, 67, 68, 69, 70, 71, 72

SLOT = 32768
WR = 3 * SLOT
QST = 20480
NQST = 3


def vr(b, n):
    return f"v[{b}:{b + n - 1}]"


def srd(b):
    return f"s[{b}:{b + 3}]"


class Gen:
    def __init__(self, opt):
        self.o = opt
        self.a = Asm()
        self.lg = Fifo(self.a, "lgkmcnt", 15)
        self.vm = {0: Fifo(self.a, "vmcnt", 63), 1: Fifo(self.a, "vmcnt", 63)}
        self.fr = 0
        self.base = {}
        self.nstamp = 0

    def role_block(self, role, body):
        a = self.a
        lab = a.label("skip")
        a(f"s_cmp_eq_u32 s{sRole}, {role}")
        a(f"s_cbranch_scc0 {lab}")
        a.begin_cond()
        body()
        a.end_cond()
        a(f"{lab}:")

    def role_wait(self, role, tag):
        if self.vm[role].count_for(tag) is None:
            return
        self.role_block(role, lambda: self.vm[role].wait(tag))

    def stamp(self):
        if not self.o.stamps:
            return
        a = self.a
        assert not self.lg.q
        a("s_memtime s[98:99]")
        a("s_waitcnt lgkmcnt(0)")
        a(f"v_writelane_b32 v{vStamp}, s98, {self.nstamp}")
        self.nstamp += 1

    def barrier(self):
        assert not self.lg.q, self.lg.q
        self.a("s_barrier")
        self.stamp()

    def rebase(self, name, regs, lo, hi):
        cur = self.base.get(name, 0)
        if lo - cur >= 0 and hi - cur <= 65535:
            return cur
        new = lo
        d = (new - cur) & 0xFFFFFFFF
        for r in regs:
            self.a(f"v_add_u32 v{r}, 0x{d:x}, v{r}")
        self.base[name] = new
        return new

    def run_items(self, items, fillers=(), mid=None, pre=()):
        a = self.a
        fillers = list(fillers)
        nm = sum(len(m) for _, m in items)
        regs = [None] * len(items)
        nxt = 0
        live = 0

        def issue():
            nonlocal nxt, live
            while nxt < len(items) and live < NFR and len(self.lg.q) + len(items[nxt][0]) <= 15:
                b = FR0 + 4 * self.fr
                self.fr = (self.fr + 1) % NFR
                regs[nxt] = b
                for t in items[nxt][0]:
                    a(t.format(f=vr(b, 4), lo=vr(b, 2), hi=vr(b + 2, 2)))
                    self.lg.push(("it", nxt))
                nxt += 1
                live += 1

        for t, tag in pre:
            a(t)
            self.lg.push(tag)
        issue()
        if mid:
            mid()
        done = 0
        fdone = 0
        for i, (rd, mf) in enumerate(items):
            self.lg.wait(("it", i))
            b = regs[i]
            for t in mf:
                a(t.format(f=vr(b, 4)))
                done += 1
                want = len(fillers) * done // nm
                while fdone < want:
                    a(fillers[fdone])
                    fdone += 1
            live -= 1
            issue()
        assert fdone == len(fillers)
        assert not self.lg.q

    def dma(self, voff, s, soff, off, role, tag, nt=False):
        o = f" offset:{off}" if off else ""
        n = " nt" if nt else ""
        self.a(f"buffer_load_dwordx4 v{voff}, {srd(s)}, s{soff} offen{o}{n} lds")
        self.vm[role].push(tag)

    def issue_q(self, t):
        a = self.a
        st = WR + (t % NQST) * QST
        for cp in range(4):
            a(f"s_add_u32 m0, s{sL4k}, {st + cp * 1024}")
            a(f"s_add_u32 s{sT}, s{sWqoff}, {t * 262144 + cp * 128}")
            self.dma(vWq, SWQ, sT, 0, 0, ("q", t))
        a(f"s_add_u32 m0, s{sL1k}, {st + 16384}")
        a(f"s_add_u32 s{sT}, s{sXoff}, {t * 64}")
        self.dma(vX, SX, sT, 0, 0, ("q", t))

    def issue_kv(self, s, slot, srdn, soff_expr):
        a = self.a
        for half in range(2):
            a(f"s_add_u32 m0, s{sL8k}, {slot * SLOT + half * 4096}")
            soff_expr(half * 4096)
            for j in range(4):
                self.dma(vKV[j], srdn, sT, j * 1024, 1, ("kv", s), nt=self.o.kv_nt)

    def issue_wo(self, p, slot):
        a = self.a
        for i in range(8):
            a(f"s_add_u32 m0, s{sL8k}, {slot * SLOT + i * 1024}")
            a(f"s_add_u32 s{sT}, s{sWooff}, {i * 9216 + p * 128}")
            self.dma(vWo, SWO, sT, 0, 0, ("wo", p))

    def prologue(self):
        a = self.a
        a("s_cmp_ge_u32 s2, 256")
        a("s_cbranch_scc1 L_exit")
        a("s_load_dwordx16 s[36:51], s[0:1], 0")
        a("s_load_dwordx8 s[52:59], s[0:1], 64")
        a("s_load_dwordx2 s[60:61], s[0:1], 96")
        a("v_lshrrev_b32 v1, 6, v0")
        a("v_and_b32 v0, 63, v0")
        a(f"v_readfirstlane_b32 s{sW}, v1")
        a(f"s_lshr_b32 s3, s2, 3")
        a(f"s_and_b32 s{sBr}, s3, 1")
        a(f"s_lshr_b32 s{sB}, s3, 2")
        a(f"s_bfe_u32 s3, s3, 0x10001")
        a(f"s_and_b32 s{sHp}, s2, 7")
        a(f"s_lshl_b32 s{sHp}, s{sHp}, 1")
        a(f"s_add_u32 s{sHp}, s{sHp}, s3")
        a(f"s_and_b32 s{sLw}, s{sW}, 3")
        a(f"s_lshr_b32 s{sHH}, s{sW}, 2")
        a(f"s_cmp_ge_u32 s{sW}, 4")
        a(f"s_cselect_b32 s{sRole}, 1, 0")
        a(f"s_lshl_b32 s{sL8k}, s{sLw}, 13")
        a(f"s_lshl_b32 s{sL4k}, s{sLw}, 12")
        a(f"s_lshl_b32 s{sL1k}, s{sLw}, 10")
        a(f"s_mov_b32 s{sC}, {f32hex(128 ** -0.5 * 1.4426950408889634)}")
        T = FR0
        g, i16, rr, ch, t0, t1, row4, c4 = (T + k for k in range(8))
        a(f"v_lshrrev_b32 v{g}, 4, v0")
        a(f"v_and_b32 v{i16}, 15, v0")
        a(f"v_lshrrev_b32 v{rr}, 3, v0")
        a(f"v_and_b32 v{ch}, 7, v0")
        a(f"v_lshrrev_b32 v{row4}, 2, v0")
        a(f"v_and_b32 v{c4}, 3, v0")
        a(f"v_lshlrev_b32 v{t0}, 1, v{g}")
        a(f"v_xor_b32 v{t0}, v{t0}, v{i16}")
        a(f"v_lshlrev_b32 v{t0}, 4, v{t0}")
        a(f"v_lshl_or_b32 v{vKV[0]}, v{g}, 8, v{t0}")
        for j in range(1, 4):
            a(f"v_xor_b32 v{vKV[j]}, {(8 * (j & 1) + (j >> 1)) << 4}, v{vKV[0]}")
        a(f"v_and_b32 v{t0}, 6, v{rr}")
        a(f"v_xor_b32 v{t0}, v{t0}, v{ch}")
        a(f"v_lshlrev_b32 v{t0}, 4, v{t0}")
        a(f"v_and_b32 v{t1}, 4, v{rr}")
        a(f"v_add_u32 v{t1}, v{t1}, v{rr}")
        a(f"v_lshl_or_b32 v{vWq}, v{t1}, 13, v{t0}")
        a(f"v_mul_u32_u24 v{t1}, 1152, v{rr}")
        a(f"v_add_u32 v{vWo}, v{t1}, v{t0}")
        a(f"v_lshrrev_b32 v{t0}, 3, v{row4}")
        a(f"v_lshlrev_b32 v{t0}, 1, v{t0}")
        a(f"v_xor_b32 v{t0}, v{t0}, v{c4}")
        a(f"v_lshlrev_b32 v{t0}, 4, v{t0}")
        a(f"v_mul_u32_u24 v{t1}, 1152, v{row4}")
        a(f"v_add_u32 v{vX}, v{t1}, v{t0}")
        a(f"s_mul_i32 s{sXoff}, s{sB}, 73728")
        a(f"s_mul_i32 s3, s{sLw}, {16 * 1152}")
        a(f"s_add_u32 s{sT2}, s{sXoff}, 0")
        a(f"s_add_u32 s{sXoff}, s{sXoff}, s3")
        a(f"s_and_b32 s3, s{sLw}, 1")
        a(f"s_lshl_b32 s3, s3, 15")
        a(f"s_lshr_b32 s{sT}, s{sLw}, 1")
        a(f"s_lshl_b32 s{sT}, s{sT}, 17")
        a(f"s_add_u32 s3, s3, s{sT}")
        a(f"s_lshl_b32 s{sWqoff}, s{sHp}, 9")
        a(f"s_add_u32 s{sWqoff}, s{sWqoff}, s3")
        a(f"s_mul_i32 s{sWooff}, s{sHp}, {256 * 1152}")
        a(f"s_mul_i32 s3, s{sLw}, {64 * 1152}")
        a(f"s_add_u32 s{sWooff}, s{sWooff}, s3")
        a(f"s_lshl_b32 s3, s{sB}, 4")
        a(f"s_add_u32 s3, s3, s{sHp}")
        a(f"s_lshl_b32 s73, s3, 17")
        a(f"s_add_u32 s73, s73, s{sL8k}")
        a(f"s_lshl_b32 s74, s3, 1")
        a(f"s_lshr_b32 s{sT}, s{sLw}, 1")
        a(f"s_add_u32 s74, s74, s{sT}")
        a(f"s_lshl_b32 s74, s74, 17")
        a(f"s_and_b32 s{sT}, s{sL8k}, 8192")
        a(f"s_add_u32 s74, s74, s{sT}")
        a(f"s_lshl_b32 s{sT}, s{sBr}, 7")
        a(f"s_add_u32 s3, s3, s{sT}")
        a(f"s_mul_i32 s{sStoff}, s3, 73728")
        a(f"s_lshl_b32 s{sT}, s{sW}, 10")
        a(f"s_add_u32 s{sStoff}, s{sStoff}, s{sT}")
        a("s_waitcnt lgkmcnt(0)")
        a(f"s_cmp_eq_u32 s{sBr}, 0")
        a(f"s_cselect_b32 s{sKVoff}, s73, s74")
        for dst, pa, pb in ((SX, 36, 46), (SK, 38, 48), (SV, 40, 50), (SWQ, 42, 52), (SWO, 44, 54)):
            a(f"s_cselect_b64 s[{dst}:{dst + 1}], s[{pa}:{pa + 1}], s[{pb}:{pb + 1}]")
        a(f"s_lshl_b32 s{SK + 2}, 0x1000000, s{sBr}")
        a(f"s_lshr_b32 s{sKVstr}, 32768, s{sBr}")
        a(f"s_mov_b32 s{SV + 2}, s{SK + 2}")
        a(f"s_mov_b32 s{SX + 2}, 589824")
        a(f"s_mov_b32 s{SWQ + 2}, 4718592")
        a(f"s_mov_b32 s{SWO + 2}, 4718592")
        a(f"s_mov_b64 s[{SWS}:{SWS + 1}], s[60:61]")
        a(f"s_mov_b32 s{SWS + 2}, 0x10000000")
        for d in (SX, SK, SV, SWQ, SWO, SWS):
            a(f"s_mov_b32 s{d + 3}, 0x20000")

        def w_first():
            for t in range(NQST):
                self.issue_q(t)

        def kv_first():
            a(f"v_lshlrev_b32 v{t0}, 7, v0")
            a(f"s_add_u32 s{sT}, s{sT2}, s{sL8k}")
            a(f"buffer_load_dword v{vDummy}, v{t0}, {srd(SX)}, s{sT} offen")
            self.vm[1].push("warm")
            a(f"s_add_u32 s{sT}, s{sT}, 32768")
            a(f"buffer_load_dword v{vDummy}, v{t0}, {srd(SX)}, s{sT} offen")
            self.vm[1].push("warm")
            a(f"v_lshlrev_b32 v{t1}, 7, v{i16}")
            a(f"s_lshl_b32 s3, s{sLw}, 11")
            a(f"s_add_u32 s{sT}, s{sT2}, s3")
            a(f"s_add_u32 s{sT}, s{sT}, 65536")
            a(f"buffer_load_dword v{vDummy}, v{t1}, {srd(SX)}, s{sT} offen")
            self.vm[1].push("warm")
            a(f"v_lshlrev_b32 v{t0}, 7, v{c4}")
            a(f"v_lshl_or_b32 v{t0}, v{row4}, 13, v{t0}")
            a(f"s_mul_i32 s{sT}, s{sB}, {72 * 8192}")
            a(f"s_lshl_b32 s3, s{sHp}, 9")
            a(f"s_add_u32 s{sT2}, s{sT}, s3")
            a(f"s_lshl_b32 s3, s{sLw}, 17")
            a(f"s_add_u32 s{sT}, s{sT2}, s3")
            a(f"buffer_load_dword v{vDummy}, v{t0}, {srd(SWQ)}, s{sT} offen")
            self.vm[1].push("warm")
            a(f"v_and_b32 v{t1}, 0x3fff, v{t0}")
            a(f"s_lshl_b32 s3, s{sLw}, 14")
            a(f"s_add_u32 s{sT}, s{sT2}, s3")
            a(f"s_add_u32 s{sT}, s{sT}, {64 * 8192}")
            a(f"buffer_load_dword v{vDummy}, v{t1}, {srd(SWQ)}, s{sT} offen")
            self.vm[1].push("warm")
            a(f"s_mov_b32 s{sT2}, s{sKVoff}")
            for s in range(3):
                self.issue_kv(s, s, SK, lambda e: a(f"s_add_u32 s{sT}, s{sT2}, {e}"))
                a(f"s_add_u32 s{sT2}, s{sT2}, s{sKVstr}")

        self.role_block(0, w_first)
        self.role_block(1, kv_first)

        a(f"s_mul_i32 s3, s{sBr}, s{sHH}")
        a(f"s_lshl_b32 s3, s3, 14")
        fi, fr4 = T + 8, T + 9
        for dst, src in ((fi, i16), (fr4, row4)):
            a(f"v_and_b32 v{t0}, 7, v{src}")
            a(f"v_lshrrev_b32 v{t1}, 3, v{src}")
            a(f"v_lshl_or_b32 v{dst}, v{t0}, 1, v{t1}")
        a(f"v_and_b32 v{t0}, 1, v{g}")
        a(f"v_lshrrev_b32 v{t1}, 1, v{g}")
        a(f"v_lshl_or_b32 v{t0}, v{t0}, 1, v{t1}")
        a(f"v_xor_b32 v{t0}, v{t0}, v{fi}")
        a(f"v_lshlrev_b32 v{t0}, 4, v{t0}")
        a(f"v_lshl_or_b32 v{t0}, v{i16}, 8, v{t0}")
        a(f"v_add_u32 v{vRk[0]}, s3, v{t0}")
        for t in range(1, 4):
            a(f"v_xor_b32 v{vRk[t]}, {t * 64}, v{vRk[0]}")
        a(f"v_lshrrev_b32 v{t0}, 1, v{c4}")
        a(f"v_xor_b32 v{t0}, v{t0}, v{fr4}")
        a(f"v_lshlrev_b32 v{t0}, 4, v{t0}")
        a(f"v_lshl_or_b32 v{t0}, v{row4}, 8, v{t0}")
        a(f"v_and_b32 v{t1}, 1, v{c4}")
        a(f"v_lshl_or_b32 v{t0}, v{t1}, 3, v{t0}")
        a(f"v_add_u32 v{vRv[0]}, s3, v{t0}")
        for d in range(1, 8):
            a(f"v_xor_b32 v{vRv[d]}, {d * 32}, v{vRv[0]}")
        a(f"v_bfe_u32 v{t0}, v{row4}, 1, 2")
        a(f"v_lshlrev_b32 v{t1}, 5, v{t0}")
        a(f"v_lshl_or_b32 v{t1}, v{c4}, 3, v{t1}")
        a(f"v_lshl_or_b32 v{vRo}, v{row4}, 7, v{t1}")
        a(f"s_lshl_b32 s3, s{sLw}, 5")
        a(f"v_xor_b32 v{vRo}, s3, v{vRo}")
        a(f"v_and_b32 v{t0}, 7, v{row4}")
        a(f"v_lshl_or_b32 v{t1}, v{t0}, 7, v{t1}")
        a(f"v_lshrrev_b32 v{t0}, 1, v{g}")
        a(f"v_lshl_or_b32 v{t1}, v{t0}, 13, v{t1}")
        a(f"s_lshl_b32 s3, s{sHH}, 11")
        a(f"s_add_u32 s3, s3, {WR}")
        a(f"v_add_u32 v{vRq[0]}, s3, v{t1}")
        for u in range(1, 4):
            a(f"v_xor_b32 v{vRq[u]}, {u * 32}, v{vRq[0]}")
        a(f"v_lshrrev_b32 v{t0}, 3, v{i16}")
        a(f"v_lshlrev_b32 v{t0}, 1, v{t0}")
        a(f"v_xor_b32 v{t0}, v{t0}, v{g}")
        a(f"v_lshlrev_b32 v{t0}, 4, v{t0}")
        a(f"v_lshl_or_b32 v{t0}, v{i16}, 6, v{t0}")
        a(f"s_add_u32 s3, s{sL1k}, {WR + 16384}")
        a(f"v_add_u32 v{vRx}, s3, v{t0}")
        a(f"v_lshlrev_b32 v{vLin}, 4, v0")
        a(f"v_lshlrev_b32 v{t0}, 6, v{i16}")
        a(f"v_lshl_or_b32 v{vSt}, v{g}, 4, v{t0}")
        if self.o.stamps:
            a(f"v_mov_b32 v{vStamp}, 0")
            a("s_memrealtime s[98:99]")
            a("s_waitcnt lgkmcnt(0)")
            a(f"v_writelane_b32 v{vStamp}, s98, 62")
        self.stamp()

    def qphase(self):
        a = self.a
        for t in range(18):
            self.role_wait(0, ("q", t))
            self.barrier()
            st = (t % NQST) * QST
            items = []
            for m in range(8):
                u, hi = m & 3, m >> 2
                off = st + hi * 1024
                c = "0" if t == 0 else vr(vS + 4 * m, 4)
                items.append((
                    [f"ds_read_b64_tr_b16 {{lo}}, v{vRq[u]} offset:{off}",
                     f"ds_read_b64_tr_b16 {{hi}}, v{vRq[u]} offset:{off + 4096}"],
                    [f"v_mfma_f32_16x16x32_bf16 {vr(vS + 4 * m, 4)}, {{f}}, {vr(vXf, 4)}, {c}"]))
            mid = None
            if t >= 1 and t + NQST - 1 < 18:
                mid = lambda t=t: self.role_block(0, lambda: self.issue_q(t + NQST - 1))
            self.run_items(items, mid=mid,
                           pre=[(f"ds_read_b128 {vr(vXf, 4)}, v{vRx} offset:{st}", ("it", 0))])
        for t in range(4):
            for k in range(4):
                a(f"v_cvt_pk_bf16_f32 v{vQ + 4 * t + k}, v{vS + 8 * t + 2 * k}, v{vS + 8 * t + 2 * k + 1}")
        for t in range(4):
            a(f"v_permlane16_swap_b32 v{vQ + 4 * t}, v{vQ + 4 * t + 2}")
            a(f"v_permlane16_swap_b32 v{vQ + 4 * t + 1}, v{vQ + 4 * t + 3}")

    def max_ops(self, u, first):
        b = vS + 16 * u
        ops = []
        if first:
            ops.append(f"v_max3_f32 v1, v{b}, v{b + 1}, v{b + 2}")
            ops.append(f"v_max_f32 v1, v1, v{b + 3}")
            k = 4
        else:
            k = 0
        while k < 16:
            ops.append(f"v_max3_f32 v1, v1, v{b + k}, v{b + k + 1}")
            k += 2
        return ops

    def p_ops(self, u):
        b = vS + 16 * u
        ops = []
        for k in range(0, 16, 4):
            for j in range(4):
                ops.append(f"v_fma_f32 v{b + k + j}, v{b + k + j}, s{sC}, -v2")
            for j in range(4):
                ops.append(f"v_exp_f32 v{b + k + j}, v{b + k + j}")
        for k in range(8):
            ops.append(f"v_cvt_pk_bf16_f32 v{b + k}, v{b + 2 * k}, v{b + 2 * k + 1}")
        return ops

    def main(self, isB):
        a = self.a
        n = 8 if isB else 4
        upn = 1 if isB else 2
        stride = 16384 if isB else 32768
        reqs = [("kv", s) for s in range(2 * n)] + [("wo", 0), ("wo", 1), ("wo", 2), ("o", 0)] + \
               [("wo", p) for p in range(3, 9)]
        slot_of = {("kv", s): s for s in range(3)}
        nreq = 3
        free = []
        release_next = [3, 4]

        def grant():
            nonlocal nreq
            got = []
            while free and nreq < len(reqs):
                r = reqs[nreq]
                slot_of[r] = free.pop(0)
                got.append(r)
                nreq += 1
            return got

        def issue(got):
            kv = [r for r in got if r[0] == "kv"]
            wo = [r for r in got if r[0] == "wo"]

            def do_kv():
                for (_, s) in kv:
                    sr, i = (SK, s) if s < n else (SV, s - n)
                    self.issue_kv(s, slot_of[("kv", s)], sr,
                                  lambda e, i=i: a(f"s_add_u32 s{sT}, s{sKVoff}, {i * stride + e}"))

            def do_wo():
                for (_, p) in wo:
                    self.issue_wo(p, slot_of[("wo", p)])

            if kv:
                self.role_block(1, do_kv)
            if wo:
                self.role_block(0, do_wo)

        def wo_warm():
            def body():
                a(f"v_lshlrev_b32 v{vX}, 7, v0")
                a(f"s_mul_i32 s{sT2}, s{sHp}, {256 * 1152}")
                a(f"s_mul_i32 s3, s{sB}, 36864")
                a(f"s_add_u32 s{sT2}, s{sT2}, s3")
                a(f"s_add_u32 s{sT}, s{sT2}, s{sL8k}")
                a(f"buffer_load_dword v{vDummy}, v{vX}, {srd(SWO)}, s{sT} offen")
                self.vm[0].push("warm")
                a(f"v_and_b32 v{vX}, 0x3ff, v{vX}")
                a(f"s_add_u32 s{sT}, s{sT2}, s{sL1k}")
                a(f"s_add_u32 s{sT}, s{sT}, 32768")
                a(f"buffer_load_dword v{vDummy}, v{vX}, {srd(SWO)}, s{sT} offen")
                self.vm[0].push("warm")
            self.role_block(0, body)

        warm_at = max(0, 2 * n - 4 - (self.o.wo_warm_step if isB else self.o.wo_warm_step // 2))

        def step_head(role, tag):
            nonlocal release_next
            self.role_wait(role, tag)
            self.barrier()
            free.extend(release_next)
            release_next = [slot_of[tag]]
            return grant()

        for s in range(n):
            got = step_head(1, ("kv", s))
            sb = slot_of[("kv", s)] * SLOT
            cur = self.rebase("k", vRk, sb, sb + SLOT - 1)
            for e in range(upn):
                u = s * upn + e
                items = []
                for kb in range(4):
                    d = vr(vS + 16 * u + 4 * kb, 4)
                    for t in range(4):
                        off = sb - cur + e * 16384 + kb * 4096
                        items.append(([f"ds_read_b128 {{f}}, v{vRk[t]} offset:{off}"],
                                      [f"v_mfma_f32_16x16x32_bf16 {d}, {{f}}, {vr(vQ + 4 * t, 4)}, {'0' if t == 0 else d}"]))
                fill = self.max_ops(u - 1, u == 1) if u >= 1 else []

                def mid(got=got, e=e, s=s):
                    if e == 0:
                        issue(got)
                        if s == warm_at:
                            wo_warm()
                self.run_items(items, fillers=fill, mid=mid)
        for op in self.max_ops(7, False):
            a(op)
        a("v_mov_b32 v2, v1")
        a("v_permlane16_swap_b32 v1, v2")
        a("v_max_f32 v1, v1, v2")
        a("v_mov_b32 v2, v1")
        a("v_permlane32_swap_b32 v1, v2")
        a("v_max_f32 v1, v1, v2")
        a(f"v_mul_f32 v2, s{sC}, v1")
        for k in range(4):
            a(f"v_mov_b32 v{vOnes + k}, 0x3f803f80")
        for op in self.p_ops(0):
            a(op)
        for s in range(n, 2 * n):
            got = step_head(1, ("kv", s))
            sb = slot_of[("kv", s)] * SLOT
            cur = self.rebase("v", vRv, sb, sb + SLOT - 1)
            for e in range(upn):
                u = (s - n) * upn + e
                items = []
                for j in range(2):
                    p = vr(vS + 16 * u + 4 * j, 4)
                    first = (u == 0 and j == 0)
                    for dt in range(8):
                        off = sb - cur + e * 16384 + j * 8192
                        d = vr(vO + 4 * dt, 4)
                        mf = [f"v_mfma_f32_16x16x32_bf16 {d}, {{f}}, {p}, {'0' if first else d}"]
                        if dt == 0:
                            mf.append(f"v_mfma_f32_16x16x32_bf16 {vr(vL, 4)}, {vr(vOnes, 4)}, {p}, {'0' if first else vr(vL, 4)}")
                        items.append(([f"ds_read_b64_tr_b16 {{lo}}, v{vRv[dt]} offset:{off}",
                                       f"ds_read_b64_tr_b16 {{hi}}, v{vRv[dt]} offset:{off + 4096}"], mf))
                fill = self.p_ops(u + 1) if u < 7 else []

                def mid(got=got, e=e, s=s):
                    if e == 0:
                        issue(got)
                        if s == warm_at:
                            wo_warm()
                self.run_items(items, fillers=fill, mid=mid)
        vP = 208
        a(f"v_rcp_f32 v1, v{vL}")
        for k in range(32):
            a(f"v_mul_f32 v{vO + k}, v1, v{vO + k}")
        for k in range(16):
            a(f"v_cvt_pk_bf16_f32 v{vP + k}, v{vO + 2 * k}, v{vO + 2 * k + 1}")
        ob = slot_of[("o", 0)] * SLOT
        a(f"s_lshl_b32 s3, s{sW}, 12")
        a(f"s_add_u32 s3, s3, {ob}")
        a(f"v_add_u32 v1, s3, v{vLin}")
        for t in range(4):
            a(f"ds_write_b128 v1, {vr(vP + 4 * t, 4)} offset:{t * 1024}")
        a(f"s_lshl_b32 s3, s{sHH}, 13")
        a(f"s_add_u32 s3, s3, {ob}")
        a(f"v_add_u32 v2, s3, v{vLin}")
        a("s_waitcnt lgkmcnt(0)")
        vOf = 128
        vAcc, vPk = 192, 224

        def out_ops(p):
            ac, pk = vAcc + 8 * (p & 1), vPk + 4 * (p & 1)
            ops = [f"v_cvt_pk_bf16_f32 v{pk + k}, v{ac + 2 * k}, v{ac + 2 * k + 1}" for k in range(4)]
            ops.append(f"s_add_u32 s{sT2}, s{sStoff}, {p * 8192}")
            ops.append(f"buffer_store_dwordx4 {vr(pk, 4)}, v{vSt}, {srd(SWS)}, s{sT2} offen")
            return ops

        for p in range(9):
            got = step_head(0, ("wo", p))
            if p == 0:
                release_next.append(slot_of[("o", 0)])
                for hd in range(2):
                    for nn in range(2):
                        for t in range(4):
                            if len(self.lg.q) == 15:
                                self.lg.wait(self.lg.q[0])
                            k = (hd * 4 + t) * 2 + nn
                            a(f"ds_read_b128 {vr(vOf + 4 * k, 4)}, v2 offset:{hd * 16384 + nn * 4096 + t * 1024}")
                            self.lg.push(("of", k))
                a("s_waitcnt lgkmcnt(0)")
                self.lg.clear()
            sb = slot_of[("wo", p)] * SLOT
            cur = self.rebase("o", [vRo], sb, sb + SLOT - 1)
            ac = vAcc + 8 * (p & 1)
            items = []
            for k in range(8):
                off = sb - cur + k * 4096
                mf = []
                for nn in range(2):
                    d = vr(ac + 4 * nn, 4)
                    mf.append(f"v_mfma_f32_16x16x32_bf16 {d}, {{f}}, {vr(vOf + 4 * (2 * k + nn), 4)}, {'0' if k == 0 else d}")
                items.append(([f"ds_read_b64_tr_b16 {{lo}}, v{vRo} offset:{off}",
                               f"ds_read_b64_tr_b16 {{hi}}, v{vRo} offset:{off + 2048}"], mf))

            def mid(got=got, p=p):
                issue(got)
                if p >= 1:
                    for op in out_ops(p - 1):
                        a(op)
                    self.vm[0].push("st")
                    self.vm[1].push("st")
            self.run_items(items, mid=mid)
        for op in out_ops(8):
            a(op)
        if self.o.stamps:
            a("s_waitcnt vmcnt(0)")
            self.stamp()
            a("s_memrealtime s[98:99]")
            a("s_waitcnt lgkmcnt(0)")
            a(f"v_writelane_b32 v{vStamp}, s98, 63")
            a(f"s_lshl_b32 s3, s2, 3")
            a(f"s_add_u32 s3, s3, s{sW}")
            a(f"s_lshl_b32 s3, s3, 8")
            a(f"s_add_u32 s3, s3, 0x2000000")
            a(f"v_lshlrev_b32 v1, 2, v0")
            a(f"buffer_store_dword v{vStamp}, v1, {srd(SWS)}, s3 offen")
            if self.o.dbg and isB:
                lab = a.label("dbg")
                a("s_cmp_eq_u32 s2, 8")
                a(f"s_cbranch_scc0 {lab}")
                a(f"s_cmp_eq_u32 s{sW}, 0")
                a(f"s_cbranch_scc0 {lab}")
                a("s_mov_b64 s[76:77], s[58:59]")
                a("s_mov_b32 s78, 256")
                a("s_mov_b32 s79, 0x20000")
                a("v_mov_b32 v2, 0")
                a(f"v_readlane_b32 s80, v{vStamp}, 0")
                for k, idx in enumerate([1, 3, 5, 19, 21, 23, 25, 27, 29, 31, 33, 35, 39, 44]):
                    a(f"v_readlane_b32 s81, v{vStamp}, {idx}")
                    a("s_sub_u32 s81, s81, s80")
                    a(f"v_writelane_b32 v2, s81, {k}")
                a(f"v_readlane_b32 s80, v{vStamp}, 62")
                a(f"v_readlane_b32 s81, v{vStamp}, 63")
                a("s_sub_u32 s81, s81, s80")
                a(f"v_writelane_b32 v2, s81, 15")
                a("buffer_store_dword v2, v1, s[76:79], 0 offen")
                a("s_mov_b32 s3, 0x3000000")
                a(f"buffer_store_dword v2, v1, {srd(SWS)}, s3 offen")
                a(f"{lab}:")
        a("s_endpgm")

    def kernel1(self):
        a = self.a
        self.prologue()
        self.qphase()
        a(f"s_cmp_eq_u32 s{sBr}, 0")
        a("s_cbranch_scc0 L_branchB")
        snap = (copy.deepcopy(self.vm[0].q), copy.deepcopy(self.vm[1].q), dict(self.base), self.fr, self.nstamp)
        self.main(False)
        a("L_branchB:")
        a("s_nop 7")
        self.vm[0].q, self.vm[1].q, self.base, self.fr, self.nstamp = snap
        self.main(True)
        a("L_exit:")
        a("s_endpgm")


def kernel2(opt):
    a = Asm()
    a("s_cmp_ge_u32 s2, 288")
    a("s_cbranch_scc1 L2_exit")
    a("s_load_dwordx2 s[8:9], s[0:1], 96")
    a("s_load_dwordx2 s[12:13], s[0:1], 80")
    a(f"s_mul_hi_u32 s4, s2, {(2 ** 32 + 17) // 18}")
    a("s_mul_i32 s3, s4, 18")
    a("s_sub_u32 s3, s2, s3")
    a("s_lshr_b32 s5, s3, 1")
    a("s_and_b32 s6, s3, 1")
    a(f"s_mul_i32 s7, s4, {16 * 73728}")
    a("s_lshl_b32 s3, s3, 12")
    a("s_add_u32 s7, s7, s3")
    a("v_lshrrev_b32 v1, 4, v0")
    a("v_bfe_u32 v2, v0, 2, 2")
    a("v_and_b32 v3, 3, v0")
    a("v_lshlrev_b32 v4, 10, v2")
    a("v_lshl_or_b32 v4, v1, 6, v4")
    a("v_lshl_or_b32 v4, v3, 4, v4")
    a("s_mov_b32 s10, 0x10000000")
    a("s_mov_b32 s11, 0x20000")
    a("s_mov_b32 s14, 1179648")
    a("s_mov_b32 s15, 0x20000")
    a("s_waitcnt lgkmcnt(0)")
    for h in range(16):
        a(f"buffer_load_dwordx4 {vr(16 + 4 * h, 4)}, v4, s[8:11], s7 offen")
        if h < 15:
            a("s_add_u32 s7, s7, 73728")
    a("s_and_b32 s3, s4, 7")
    a("s_lshl_b32 s3, s3, 1")
    a("s_add_u32 s3, s3, s6")
    a(f"s_mul_i32 s3, s3, {32 * 2304}")
    a("s_lshr_b32 s4, s4, 3")
    a("s_mul_i32 s4, s4, 1152")
    a("s_add_u32 s3, s3, s4")
    a("s_lshl_b32 s5, s5, 7")
    a("s_add_u32 s3, s3, s5")
    a(f"s_add_u32 s4, s3, {16 * 2304}")
    a("v_mul_u32_u24 v5, 2304, v1")
    a("v_and_b32 v6, 15, v0")
    a("v_lshl_add_u32 v5, v6, 3, v5")
    for h in range(16):
        a(f"s_waitcnt vmcnt({15 - h})")
        for k in range(4):
            s = 16 + 4 * h + k
            if h == 0:
                a(f"v_lshlrev_b32 v{8 + 2 * k}, 16, v{s}")
                a(f"v_and_b32 v{9 + 2 * k}, 0xffff0000, v{s}")
            else:
                a(f"v_lshlrev_b32 v6, 16, v{s}")
                a(f"v_and_b32 v7, 0xffff0000, v{s}")
                a(f"v_add_f32 v{8 + 2 * k}, v{8 + 2 * k}, v6")
                a(f"v_add_f32 v{9 + 2 * k}, v{9 + 2 * k}, v7")
    for k in range(4):
        a(f"v_cvt_pk_bf16_f32 v{16 + k}, v{8 + 2 * k}, v{9 + 2 * k}")
    a("buffer_store_dwordx2 v[16:17], v5, s[12:15], s3 offen")
    a("buffer_store_dwordx2 v[18:19], v5, s[12:15], s4 offen")
    if opt.dbg:
        a("s_cmp_eq_u32 s2, 0")
        a("s_cbranch_scc0 L2_exit")
        a("s_load_dwordx2 s[16:17], s[0:1], 88")
        a("s_mov_b32 s18, 256")
        a("s_mov_b32 s19, 0x20000")
        a("v_lshlrev_b32 v1, 2, v0")
        a("s_mov_b32 s3, 0x3000000")
        a("buffer_load_dword v2, v1, s[8:11], s3 offen")
        a("s_waitcnt vmcnt(0) lgkmcnt(0)")
        a("buffer_store_dword v2, v1, s[16:19], 0 offen")
    a("L2_exit:")
    a("s_endpgm")
    a.pad()
    return a.text()


def kd(name, vg, sg):
    return f""".amdhsa_kernel {name}
  .amdhsa_next_free_vgpr {vg}
  .amdhsa_next_free_sgpr {sg}
  .amdhsa_accum_offset {(vg + 3) // 4 * 4}
  .amdhsa_group_segment_fixed_size 0
  .amdhsa_kernarg_size 104
  .amdhsa_user_sgpr_count 2
  .amdhsa_user_sgpr_kernarg_segment_ptr 1
  .amdhsa_system_sgpr_workgroup_id_x 1
.end_amdhsa_kernel
"""


def build(opt):
    g = Gen(opt)
    g.kernel1()
    npad = g.a.pad()
    k1, k2 = NAME + "_kernel", "reduce_heads_kernel"
    s = HEADER
    s += f"; @launch kernel={k1} grid=(256,1,1) block=(512,1,1) lds=163840\n"
    s += f"; @launch kernel={k2} grid=(288,1,1) block=(256,1,1) lds=0\n"
    s += '.amdgcn_target "amdgcn-amd-amdhsa--gfx950"\n.text\n'
    s += f".globl {k1}\n.p2align 8\n.type {k1},@function\n{k1}:\n" + g.a.text()
    s += f".globl {k2}\n.p2align 8\n.type {k2},@function\n{k2}:\n" + kernel2(opt)
    s += '.section .rodata,"a"\n.p2align 6\n' + kd(k1, 256, 102) + ".p2align 6\n" + kd(k2, 80, 32)
    return s, npad


if __name__ == "__main__":
    o = Opt()
    out = sys.argv[1]
    for arg in sys.argv[2:]:
        k, v = arg.split("=")
        setattr(o, k, type(getattr(Opt, k))(int(v)) if getattr(Opt, k) is not None else v)
    s, npad = build(o)
    open(out, "w").write(s)
    print("wrote", out, len(s), "bytes; nops inserted", npad)
```

```python
import copy
import struct
import sys

from asmlib import Asm, Fifo

NAME = "concat_heads__gqa_block_cached__mha_block_cached__near_ridge"

HEADER = """; Kernarg layout for this problem (104 bytes, ptrs only, base s[0:1]):
;   offset  32: d_in[4] A_wo  shape=(4096, 576) dtype=bfloat16
;   offset  72: d_in[9] B_wo  shape=(4096, 576) dtype=bfloat16
;   offset  96: d_ws      268435456 bytes workspace
"""


def f32hex(x):
    return "0x%08x" % struct.unpack("<I", struct.pack("<f", x))[0]


class Opt:
    stamps = False
    kv_nt = False
    wo_warm_step = 4
    dump = None
    dbg = False
    spin = -1


vKV = [4, 5, 6, 7]
vWq, vX, vWo, vRx = 8, 9, 10, 11
vRq = [12, 13, 14, 15]
vRk = [16, 17, 18, 19]
vRv = list(range(20, 28))
vRo, vLin, vSt, vDummy = 28, 29, 30, 31
vStamp = 3
vQ = 32
vO = 32
vL = 64
vOnes = 68
vXf = 68
FR0, NFR = 72, 14
vS = 128
sW, sLw, sRole, sBr = 4, 5, 6, 7
SX, SK, SV, SWQ, SWO, SWS = 8, 12, 16, 20, 24, 28
sXoff, sWqoff, sKVoff, sWooff = 32, 33, 34, 35
sL8k, sC, sStoff, sT, sT2, sHp, sB, sL4k, sL1k, sKVstr, sHH = 62, 63, 64, 65, 66, 67, 68, 69, 70, 71, 72

SLOT = 32768
WR = 3 * SLOT
QST = 20480
NQST = 3


def vr(b, n):
    return f"v[{b}:{b + n - 1}]"


def srd(b):
    return f"s[{b}:{b + 3}]"


class Gen:
    def __init__(self, opt):
        self.o = opt
        self.a = Asm()
        self.lg = Fifo(self.a, "lgkmcnt", 15)
        self.vm = {0: Fifo(self.a, "vmcnt", 63), 1: Fifo(self.a, "vmcnt", 63)}
        self.fr = 0
        self.base = {}
        self.nstamp = 0

    def role_block(self, role, body):
        a = self.a
        lab = a.label("skip")
        a(f"s_cmp_eq_u32 s{sRole}, {role}")
        a(f"s_cbranch_scc0 {lab}")
        a.begin_cond()
        body()
        a.end_cond()
        a(f"{lab}:")

    def role_wait(self, role, tag):
        if self.vm[role].count_for(tag) is None:
            return
        self.role_block(role, lambda: self.vm[role].wait(tag))

    def stamp(self):
        if not self.o.stamps:
            return
        a = self.a
        assert not self.lg.q
        a("s_memtime s[98:99]")
        a("s_waitcnt lgkmcnt(0)")
        a(f"v_writelane_b32 v{vStamp}, s98, {self.nstamp}")
        self.nstamp += 1

    def barrier(self):
        assert not self.lg.q, self.lg.q
        self.a("s_barrier")
        self.stamp()

    def rebase(self, name, regs, lo, hi):
        cur = self.base.get(name, 0)
        if lo - cur >= 0 and hi - cur <= 65535:
            return cur
        new = lo
        d = (new - cur) & 0xFFFFFFFF
        for r in regs:
            self.a(f"v_add_u32 v{r}, 0x{d:x}, v{r}")
        self.base[name] = new
        return new

    def run_items(self, items, fillers=(), mid=None, pre=()):
        a = self.a
        fillers = list(fillers)
        nm = sum(len(m) for _, m in items)
        regs = [None] * len(items)
        nxt = 0
        live = 0

        def issue():
            nonlocal nxt, live
            while nxt < len(items) and live < NFR and len(self.lg.q) + len(items[nxt][0]) <= 15:
                b = FR0 + 4 * self.fr
                self.fr = (self.fr + 1) % NFR
                regs[nxt] = b
                for t in items[nxt][0]:
                    a(t.format(f=vr(b, 4), lo=vr(b, 2), hi=vr(b + 2, 2)))
                    self.lg.push(("it", nxt))
                nxt += 1
                live += 1

        for t, tag in pre:
            a(t)
            self.lg.push(tag)
        issue()
        if mid:
            mid()
        done = 0
        fdone = 0
        for i, (rd, mf) in enumerate(items):
            self.lg.wait(("it", i))
            b = regs[i]
            for t in mf:
                a(t.format(f=vr(b, 4)))
                done += 1
                want = len(fillers) * done // nm
                while fdone < want:
                    a(fillers[fdone])
                    fdone += 1
            live -= 1
            issue()
        assert fdone == len(fillers)
        assert not self.lg.q

    def dma(self, voff, s, soff, off, role, tag, nt=False):
        o = f" offset:{off}" if off else ""
        n = " nt" if nt else ""
        self.a(f"buffer_load_dwordx4 v{voff}, {srd(s)}, s{soff} offen{o}{n} lds")
        self.vm[role].push(tag)

    def issue_q(self, t):
        a = self.a
        st = WR + (t % NQST) * QST
        for cp in range(4):
            a(f"s_add_u32 m0, s{sL4k}, {st + cp * 1024}")
            a(f"s_add_u32 s{sT}, s{sWqoff}, {t * 262144 + cp * 128}")
            self.dma(vWq, SWQ, sT, 0, 0, ("q", t))
        a(f"s_add_u32 m0, s{sL1k}, {st + 16384}")
        a(f"s_add_u32 s{sT}, s{sXoff}, {t * 64}")
        self.dma(vX, SX, sT, 0, 0, ("q", t))

    def issue_kv(self, s, slot, srdn, soff_expr):
        a = self.a
        for half in range(2):
            a(f"s_add_u32 m0, s{sL8k}, {slot * SLOT + half * 4096}")
            soff_expr(half * 4096)
            for j in range(4):
                self.dma(vKV[j], srdn, sT, j * 1024, 1, ("kv", s), nt=self.o.kv_nt)

    def issue_wo(self, p, slot):
        a = self.a
        for i in range(8):
            a(f"s_add_u32 m0, s{sL8k}, {slot * SLOT + i * 1024}")
            a(f"s_add_u32 s{sT}, s{sWooff}, {i * 9216 + p * 128}")
            self.dma(vWo, SWO, sT, 0, 0, ("wo", p))

    def prologue(self):
        a = self.a
        a("s_cmp_ge_u32 s2, 256")
        a("s_cbranch_scc1 L_exit")
        a("s_load_dwordx16 s[36:51], s[0:1], 0")
        a("s_load_dwordx8 s[52:59], s[0:1], 64")
        a("s_load_dwordx2 s[60:61], s[0:1], 96")
        a("v_lshrrev_b32 v1, 6, v0")
        a("v_and_b32 v0, 63, v0")
        a(f"v_readfirstlane_b32 s{sW}, v1")
        a(f"s_lshr_b32 s3, s2, 3")
        a(f"s_and_b32 s{sBr}, s3, 1")
        a(f"s_lshr_b32 s{sB}, s3, 2")
        a(f"s_bfe_u32 s3, s3, 0x10001")
        a(f"s_and_b32 s{sHp}, s2, 7")
        a(f"s_lshl_b32 s{sHp}, s{sHp}, 1")
        a(f"s_add_u32 s{sHp}, s{sHp}, s3")
        a(f"s_and_b32 s{sLw}, s{sW}, 3")
        a(f"s_lshr_b32 s{sHH}, s{sW}, 2")
        a(f"s_cmp_ge_u32 s{sW}, 4")
        a(f"s_cselect_b32 s{sRole}, 1, 0")
        a(f"s_lshl_b32 s{sL8k}, s{sLw}, 13")
        a(f"s_lshl_b32 s{sL4k}, s{sLw}, 12")
        a(f"s_lshl_b32 s{sL1k}, s{sLw}, 10")
        a(f"s_mov_b32 s{sC}, {f32hex(128 ** -0.5 * 1.4426950408889634)}")
        T = FR0
        g, i16, rr, ch, t0, t1, row4, c4 = (T + k for k in range(8))
        a(f"v_lshrrev_b32 v{g}, 4, v0")
        a(f"v_and_b32 v{i16}, 15, v0")
        a(f"v_lshrrev_b32 v{rr}, 3, v0")
        a(f"v_and_b32 v{ch}, 7, v0")
        a(f"v_lshrrev_b32 v{row4}, 2, v0")
        a(f"v_and_b32 v{c4}, 3, v0")
        a(f"v_lshlrev_b32 v{t0}, 1, v{g}")
        a(f"v_xor_b32 v{t0}, v{t0}, v{i16}")
        a(f"v_lshlrev_b32 v{t0}, 4, v{t0}")
        a(f"v_lshl_or_b32 v{vKV[0]}, v{g}, 8, v{t0}")
        for j in range(1, 4):
            a(f"v_xor_b32 v{vKV[j]}, {(8 * (j & 1) + (j >> 1)) << 4}, v{vKV[0]}")
        a(f"v_and_b32 v{t0}, 6, v{rr}")
        a(f"v_xor_b32 v{t0}, v{t0}, v{ch}")
        a(f"v_lshlrev_b32 v{t0}, 4, v{t0}")
        a(f"v_and_b32 v{t1}, 4, v{rr}")
        a(f"v_add_u32 v{t1}, v{t1}, v{rr}")
        a(f"v_lshl_or_b32 v{vWq}, v{t1}, 13, v{t0}")
        a(f"v_mul_u32_u24 v{t1}, 1152, v{rr}")
        a(f"v_add_u32 v{vWo}, v{t1}, v{t0}")
        a(f"v_lshrrev_b32 v{t0}, 3, v{row4}")
        a(f"v_lshlrev_b32 v{t0}, 1, v{t0}")
        a(f"v_xor_b32 v{t0}, v{t0}, v{c4}")
        a(f"v_lshlrev_b32 v{t0}, 4, v{t0}")
        a(f"v_mul_u32_u24 v{t1}, 1152, v{row4}")
        a(f"v_add_u32 v{vX}, v{t1}, v{t0}")
        a(f"s_mul_i32 s{sXoff}, s{sB}, 73728")
        a(f"s_mul_i32 s3, s{sLw}, {16 * 1152}")
        a(f"s_add_u32 s{sT2}, s{sXoff}, 0")
        a(f"s_add_u32 s{sXoff}, s{sXoff}, s3")
        a(f"s_and_b32 s3, s{sLw}, 1")
        a(f"s_lshl_b32 s3, s3, 15")
        a(f"s_lshr_b32 s{sT}, s{sLw}, 1")
        a(f"s_lshl_b32 s{sT}, s{sT}, 17")
        a(f"s_add_u32 s3, s3, s{sT}")
        a(f"s_lshl_b32 s{sWqoff}, s{sHp}, 9")
        a(f"s_add_u32 s{sWqoff}, s{sWqoff}, s3")
        a(f"s_mul_i32 s{sWooff}, s{sHp}, {256 * 1152}")
        a(f"s_mul_i32 s3, s{sLw}, {64 * 1152}")
        a(f"s_add_u32 s{sWooff}, s{sWooff}, s3")
        a(f"s_lshl_b32 s3, s{sB}, 4")
        a(f"s_add_u32 s3, s3, s{sHp}")
        a(f"s_lshl_b32 s73, s3, 17")
        a(f"s_add_u32 s73, s73, s{sL8k}")
        a(f"s_lshl_b32 s74, s3, 1")
        a(f"s_lshr_b32 s{sT}, s{sLw}, 1")
        a(f"s_add_u32 s74, s74, s{sT}")
        a(f"s_lshl_b32 s74, s74, 17")
        a(f"s_and_b32 s{sT}, s{sL8k}, 8192")
        a(f"s_add_u32 s74, s74, s{sT}")
        a(f"s_lshl_b32 s{sT}, s{sBr}, 7")
        a(f"s_add_u32 s3, s3, s{sT}")
        a(f"s_mul_i32 s{sStoff}, s3, 73728")
        a(f"s_lshl_b32 s{sT}, s{sW}, 10")
        a(f"s_add_u32 s{sStoff}, s{sStoff}, s{sT}")
        a("s_waitcnt lgkmcnt(0)")
        a(f"s_cmp_eq_u32 s{sBr}, 0")
        a(f"s_cselect_b32 s{sKVoff}, s73, s74")
        for dst, pa, pb in ((SX, 36, 46), (SK, 38, 48), (SV, 40, 50), (SWQ, 42, 52), (SWO, 44, 54)):
            a(f"s_cselect_b64 s[{dst}:{dst + 1}], s[{pa}:{pa + 1}], s[{pb}:{pb + 1}]")
        a(f"s_lshl_b32 s{SK + 2}, 0x1000000, s{sBr}")
        a(f"s_lshr_b32 s{sKVstr}, 32768, s{sBr}")
        a(f"s_mov_b32 s{SV + 2}, s{SK + 2}")
        a(f"s_mov_b32 s{SX + 2}, 589824")
        a(f"s_mov_b32 s{SWQ + 2}, 4718592")
        a(f"s_mov_b32 s{SWO + 2}, 4718592")
        a(f"s_mov_b64 s[{SWS}:{SWS + 1}], s[60:61]")
        a(f"s_mov_b32 s{SWS + 2}, 0x10000000")
        for d in (SX, SK, SV, SWQ, SWO, SWS):
            a(f"s_mov_b32 s{d + 3}, 0x20000")

        def w_first():
            for t in range(NQST):
                self.issue_q(t)

        def kv_first():
            a(f"v_lshlrev_b32 v{t0}, 7, v0")
            a(f"s_add_u32 s{sT}, s{sT2}, s{sL8k}")
            a(f"buffer_load_dword v{vDummy}, v{t0}, {srd(SX)}, s{sT} offen")
            self.vm[1].push("warm")
            a(f"s_add_u32 s{sT}, s{sT}, 32768")
            a(f"buffer_load_dword v{vDummy}, v{t0}, {srd(SX)}, s{sT} offen")
            self.vm[1].push("warm")
            a(f"v_lshlrev_b32 v{t1}, 7, v{i16}")
            a(f"s_lshl_b32 s3, s{sLw}, 11")
            a(f"s_add_u32 s{sT}, s{sT2}, s3")
            a(f"s_add_u32 s{sT}, s{sT}, 65536")
            a(f"buffer_load_dword v{vDummy}, v{t1}, {srd(SX)}, s{sT} offen")
            self.vm[1].push("warm")
            a(f"v_lshlrev_b32 v{t0}, 7, v{c4}")
            a(f"v_lshl_or_b32 v{t0}, v{row4}, 13, v{t0}")
            a(f"s_mul_i32 s{sT}, s{sB}, {72 * 8192}")
            a(f"s_lshl_b32 s3, s{sHp}, 9")
            a(f"s_add_u32 s{sT2}, s{sT}, s3")
            a(f"s_lshl_b32 s3, s{sLw}, 17")
            a(f"s_add_u32 s{sT}, s{sT2}, s3")
            a(f"buffer_load_dword v{vDummy}, v{t0}, {srd(SWQ)}, s{sT} offen")
            self.vm[1].push("warm")
            a(f"v_and_b32 v{t1}, 0x3fff, v{t0}")
            a(f"s_lshl_b32 s3, s{sLw}, 14")
            a(f"s_add_u32 s{sT}, s{sT2}, s3")
            a(f"s_add_u32 s{sT}, s{sT}, {64 * 8192}")
            a(f"buffer_load_dword v{vDummy}, v{t1}, {srd(SWQ)}, s{sT} offen")
            self.vm[1].push("warm")
            a(f"s_mov_b32 s{sT2}, s{sKVoff}")
            for s in range(3):
                self.issue_kv(s, s, SK, lambda e: a(f"s_add_u32 s{sT}, s{sT2}, {e}"))
                a(f"s_add_u32 s{sT2}, s{sT2}, s{sKVstr}")

        self.role_block(0, w_first)
        self.role_block(1, kv_first)

        a(f"s_mul_i32 s3, s{sBr}, s{sHH}")
        a(f"s_lshl_b32 s3, s3, 14")
        fi, fr4 = T + 8, T + 9
        for dst, src in ((fi, i16), (fr4, row4)):
            a(f"v_and_b32 v{t0}, 7, v{src}")
            a(f"v_lshrrev_b32 v{t1}, 3, v{src}")
            a(f"v_lshl_or_b32 v{dst}, v{t0}, 1, v{t1}")
        a(f"v_and_b32 v{t0}, 1, v{g}")
        a(f"v_lshrrev_b32 v{t1}, 1, v{g}")
        a(f"v_lshl_or_b32 v{t0}, v{t0}, 1, v{t1}")
        a(f"v_xor_b32 v{t0}, v{t0}, v{fi}")
        a(f"v_lshlrev_b32 v{t0}, 4, v{t0}")
        a(f"v_lshl_or_b32 v{t0}, v{i16}, 8, v{t0}")
        a(f"v_add_u32 v{vRk[0]}, s3, v{t0}")
        for t in range(1, 4):
            a(f"v_xor_b32 v{vRk[t]}, {t * 64}, v{vRk[0]}")
        a(f"v_lshrrev_b32 v{t0}, 1, v{c4}")
        a(f"v_xor_b32 v{t0}, v{t0}, v{fr4}")
        a(f"v_lshlrev_b32 v{t0}, 4, v{t0}")
        a(f"v_lshl_or_b32 v{t0}, v{row4}, 8, v{t0}")
        a(f"v_and_b32 v{t1}, 1, v{c4}")
        a(f"v_lshl_or_b32 v{t0}, v{t1}, 3, v{t0}")
        a(f"v_add_u32 v{vRv[0]}, s3, v{t0}")
        for d in range(1, 8):
            a(f"v_xor_b32 v{vRv[d]}, {d * 32}, v{vRv[0]}")
        a(f"v_bfe_u32 v{t0}, v{row4}, 1, 2")
        a(f"v_lshlrev_b32 v{t1}, 5, v{t0}")
        a(f"v_lshl_or_b32 v{t1}, v{c4}, 3, v{t1}")
        a(f"v_lshl_or_b32 v{vRo}, v{row4}, 7, v{t1}")
        a(f"s_lshl_b32 s3, s{sLw}, 5")
        a(f"v_xor_b32 v{vRo}, s3, v{vRo}")
        a(f"v_and_b32 v{t0}, 7, v{row4}")
        a(f"v_lshl_or_b32 v{t1}, v{t0}, 7, v{t1}")
        a(f"v_lshrrev_b32 v{t0}, 1, v{g}")
        a(f"v_lshl_or_b32 v{t1}, v{t0}, 13, v{t1}")
        a(f"s_lshl_b32 s3, s{sHH}, 11")
        a(f"s_add_u32 s3, s3, {WR}")
        a(f"v_add_u32 v{vRq[0]}, s3, v{t1}")
        for u in range(1, 4):
            a(f"v_xor_b32 v{vRq[u]}, {u * 32}, v{vRq[0]}")
        a(f"v_lshrrev_b32 v{t0}, 3, v{i16}")
        a(f"v_lshlrev_b32 v{t0}, 1, v{t0}")
        a(f"v_xor_b32 v{t0}, v{t0}, v{g}")
        a(f"v_lshlrev_b32 v{t0}, 4, v{t0}")
        a(f"v_lshl_or_b32 v{t0}, v{i16}, 6, v{t0}")
        a(f"s_add_u32 s3, s{sL1k}, {WR + 16384}")
        a(f"v_add_u32 v{vRx}, s3, v{t0}")
        a(f"v_lshlrev_b32 v{vLin}, 4, v0")
        a(f"v_lshlrev_b32 v{t0}, 6, v{i16}")
        a(f"v_lshl_or_b32 v{vSt}, v{g}, 4, v{t0}")
        if self.o.stamps:
            a(f"v_mov_b32 v{vStamp}, 0")
            a("s_memrealtime s[98:99]")
            a("s_waitcnt lgkmcnt(0)")
            a(f"v_writelane_b32 v{vStamp}, s98, 62")
        self.stamp()

    def qphase(self):
        a = self.a
        for t in range(18):
            self.role_wait(0, ("q", t))
            self.barrier()
            st = (t % NQST) * QST
            items = []
            for m in range(8):
                u, hi = m & 3, m >> 2
                off = st + hi * 1024
                c = "0" if t == 0 else vr(vS + 4 * m, 4)
                items.append((
                    [f"ds_read_b64_tr_b16 {{lo}}, v{vRq[u]} offset:{off}",
                     f"ds_read_b64_tr_b16 {{hi}}, v{vRq[u]} offset:{off + 4096}"],
                    [f"v_mfma_f32_16x16x32_bf16 {vr(vS + 4 * m, 4)}, {{f}}, {vr(vXf, 4)}, {c}"]))
            mid = None
            if t >= 1 and t + NQST - 1 < 18:
                mid = lambda t=t: self.role_block(0, lambda: self.issue_q(t + NQST - 1))
            self.run_items(items, mid=mid,
                           pre=[(f"ds_read_b128 {vr(vXf, 4)}, v{vRx} offset:{st}", ("it", 0))])
        for t in range(4):
            for k in range(4):
                a(f"v_cvt_pk_bf16_f32 v{vQ + 4 * t + k}, v{vS + 8 * t + 2 * k}, v{vS + 8 * t + 2 * k + 1}")
        for t in range(4):
            a(f"v_permlane16_swap_b32 v{vQ + 4 * t}, v{vQ + 4 * t + 2}")
            a(f"v_permlane16_swap_b32 v{vQ + 4 * t + 1}, v{vQ + 4 * t + 3}")

    def max_ops(self, u, first):
        b = vS + 16 * u
        ops = []
        if first:
            ops.append(f"v_max3_f32 v1, v{b}, v{b + 1}, v{b + 2}")
            ops.append(f"v_max_f32 v1, v1, v{b + 3}")
            k = 4
        else:
            k = 0
        while k < 16:
            ops.append(f"v_max3_f32 v1, v1, v{b + k}, v{b + k + 1}")
            k += 2
        return ops

    def p_ops(self, u):
        b = vS + 16 * u
        ops = []
        for k in range(0, 16, 4):
            for j in range(4):
                ops.append(f"v_fma_f32 v{b + k + j}, v{b + k + j}, s{sC}, -v2")
            for j in range(4):
                ops.append(f"v_exp_f32 v{b + k + j}, v{b + k + j}")
        for k in range(8):
            ops.append(f"v_cvt_pk_bf16_f32 v{b + k}, v{b + 2 * k}, v{b + 2 * k + 1}")
        return ops

    def main(self, isB):
        a = self.a
        n = 8 if isB else 4
        upn = 1 if isB else 2
        stride = 16384 if isB else 32768
        reqs = [("kv", s) for s in range(2 * n)] + [("wo", 0), ("wo", 1), ("wo", 2), ("o", 0)] + \
               [("wo", p) for p in range(3, 9)]
        slot_of = {("kv", s): s for s in range(3)}
        nreq = 3
        free = []
        release_next = [3, 4]

        def grant():
            nonlocal nreq
            got = []
            while free and nreq < len(reqs):
                r = reqs[nreq]
                slot_of[r] = free.pop(0)
                got.append(r)
                nreq += 1
            return got

        def issue(got):
            kv = [r for r in got if r[0] == "kv"]
            wo = [r for r in got if r[0] == "wo"]

            def do_kv():
                for (_, s) in kv:
                    sr, i = (SK, s) if s < n else (SV, s - n)
                    self.issue_kv(s, slot_of[("kv", s)], sr,
                                  lambda e, i=i: a(f"s_add_u32 s{sT}, s{sKVoff}, {i * stride + e}"))

            def do_wo():
                for (_, p) in wo:
                    self.issue_wo(p, slot_of[("wo", p)])

            if kv:
                self.role_block(1, do_kv)
            if wo:
                self.role_block(0, do_wo)

        def wo_warm():
            def body():
                a(f"v_lshlrev_b32 v{vX}, 7, v0")
                a(f"s_mul_i32 s{sT2}, s{sHp}, {256 * 1152}")
                a(f"s_mul_i32 s3, s{sB}, 36864")
                a(f"s_add_u32 s{sT2}, s{sT2}, s3")
                a(f"s_add_u32 s{sT}, s{sT2}, s{sL8k}")
                a(f"buffer_load_dword v{vDummy}, v{vX}, {srd(SWO)}, s{sT} offen")
                self.vm[0].push("warm")
                a(f"v_and_b32 v{vX}, 0x3ff, v{vX}")
                a(f"s_add_u32 s{sT}, s{sT2}, s{sL1k}")
                a(f"s_add_u32 s{sT}, s{sT}, 32768")
                a(f"buffer_load_dword v{vDummy}, v{vX}, {srd(SWO)}, s{sT} offen")
                self.vm[0].push("warm")
            self.role_block(0, body)

        warm_at = max(0, 2 * n - 4 - (self.o.wo_warm_step if isB else self.o.wo_warm_step // 2))

        def step_head(role, tag):
            nonlocal release_next
            self.role_wait(role, tag)
            self.barrier()
            free.extend(release_next)
            release_next = [slot_of[tag]]
            return grant()

        for s in range(n):
            got = step_head(1, ("kv", s))
            sb = slot_of[("kv", s)] * SLOT
            cur = self.rebase("k", vRk, sb, sb + SLOT - 1)
            for e in range(upn):
                u = s * upn + e
                items = []
                for kb in range(4):
                    d = vr(vS + 16 * u + 4 * kb, 4)
                    for t in range(4):
                        off = sb - cur + e * 16384 + kb * 4096
                        items.append(([f"ds_read_b128 {{f}}, v{vRk[t]} offset:{off}"],
                                      [f"v_mfma_f32_16x16x32_bf16 {d}, {{f}}, {vr(vQ + 4 * t, 4)}, {'0' if t == 0 else d}"]))
                fill = self.max_ops(u - 1, u == 1) if u >= 1 else []

                def mid(got=got, e=e, s=s):
                    if e == 0:
                        issue(got)
                        if s == warm_at:
                            wo_warm()
                self.run_items(items, fillers=fill, mid=mid)
        for op in self.max_ops(7, False):
            a(op)
        a("v_mov_b32 v2, v1")
        a("v_permlane16_swap_b32 v1, v2")
        a("v_max_f32 v1, v1, v2")
        a("v_mov_b32 v2, v1")
        a("v_permlane32_swap_b32 v1, v2")
        a("v_max_f32 v1, v1, v2")
        a(f"v_mul_f32 v2, s{sC}, v1")
        for k in range(4):
            a(f"v_mov_b32 v{vOnes + k}, 0x3f803f80")
        for op in self.p_ops(0):
            a(op)
        for s in range(n, 2 * n):
            got = step_head(1, ("kv", s))
            sb = slot_of[("kv", s)] * SLOT
            cur = self.rebase("v", vRv, sb, sb + SLOT - 1)
            for e in range(upn):
                u = (s - n) * upn + e
                items = []
                for j in range(2):
                    p = vr(vS + 16 * u + 4 * j, 4)
                    first = (u == 0 and j == 0)
                    for dt in range(8):
                        off = sb - cur + e * 16384 + j * 8192
                        d = vr(vO + 4 * dt, 4)
                        mf = [f"v_mfma_f32_16x16x32_bf16 {d}, {{f}}, {p}, {'0' if first else d}"]
                        if dt == 0:
                            mf.append(f"v_mfma_f32_16x16x32_bf16 {vr(vL, 4)}, {vr(vOnes, 4)}, {p}, {'0' if first else vr(vL, 4)}")
                        items.append(([f"ds_read_b64_tr_b16 {{lo}}, v{vRv[dt]} offset:{off}",
                                       f"ds_read_b64_tr_b16 {{hi}}, v{vRv[dt]} offset:{off + 4096}"], mf))
                fill = self.p_ops(u + 1) if u < 7 else []

                def mid(got=got, e=e, s=s):
                    if e == 0:
                        issue(got)
                        if s == warm_at:
                            wo_warm()
                self.run_items(items, fillers=fill, mid=mid)
        vP = 208
        a(f"v_rcp_f32 v1, v{vL}")
        for k in range(32):
            a(f"v_mul_f32 v{vO + k}, v1, v{vO + k}")
        for k in range(16):
            a(f"v_cvt_pk_bf16_f32 v{vP + k}, v{vO + 2 * k}, v{vO + 2 * k + 1}")
        ob = slot_of[("o", 0)] * SLOT
        a(f"s_lshl_b32 s3, s{sW}, 12")
        a(f"s_add_u32 s3, s3, {ob}")
        a(f"v_add_u32 v1, s3, v{vLin}")
        for t in range(4):
            a(f"ds_write_b128 v1, {vr(vP + 4 * t, 4)} offset:{t * 1024}")
        a(f"s_lshl_b32 s3, s{sHH}, 13")
        a(f"s_add_u32 s3, s3, {ob}")
        a(f"v_add_u32 v2, s3, v{vLin}")
        a("s_waitcnt lgkmcnt(0)")
        vOf = 128
        vAcc, vPk = 192, 224

        def out_ops(p):
            ac, pk = vAcc + 8 * (p & 1), vPk + 4 * (p & 1)
            ops = [f"v_cvt_pk_bf16_f32 v{pk + k}, v{ac + 2 * k}, v{ac + 2 * k + 1}" for k in range(4)]
            ops.append(f"s_add_u32 s{sT2}, s{sStoff}, {p * 8192}")
            ops.append(f"buffer_store_dwordx4 {vr(pk, 4)}, v{vSt}, {srd(SWS)}, s{sT2} offen")
            return ops

        for p in range(9):
            got = step_head(0, ("wo", p))
            if p == 0:
                release_next.append(slot_of[("o", 0)])
                for hd in range(2):
                    for nn in range(2):
                        for t in range(4):
                            if len(self.lg.q) == 15:
                                self.lg.wait(self.lg.q[0])
                            k = (hd * 4 + t) * 2 + nn
                            a(f"ds_read_b128 {vr(vOf + 4 * k, 4)}, v2 offset:{hd * 16384 + nn * 4096 + t * 1024}")
                            self.lg.push(("of", k))
                a("s_waitcnt lgkmcnt(0)")
                self.lg.clear()
            sb = slot_of[("wo", p)] * SLOT
            cur = self.rebase("o", [vRo], sb, sb + SLOT - 1)
            ac = vAcc + 8 * (p & 1)
            items = []
            for k in range(8):
                off = sb - cur + k * 4096
                mf = []
                for nn in range(2):
                    d = vr(ac + 4 * nn, 4)
                    mf.append(f"v_mfma_f32_16x16x32_bf16 {d}, {{f}}, {vr(vOf + 4 * (2 * k + nn), 4)}, {'0' if k == 0 else d}")
                items.append(([f"ds_read_b64_tr_b16 {{lo}}, v{vRo} offset:{off}",
                               f"ds_read_b64_tr_b16 {{hi}}, v{vRo} offset:{off + 2048}"], mf))

            def mid(got=got, p=p):
                issue(got)
                if p >= 1:
                    for op in out_ops(p - 1):
                        a(op)
                    self.vm[0].push("st")
                    self.vm[1].push("st")
            self.run_items(items, mid=mid)
        for op in out_ops(8):
            a(op)
        if self.o.stamps:
            a("s_waitcnt vmcnt(0)")
            self.stamp()
            a("s_memrealtime s[98:99]")
            a("s_waitcnt lgkmcnt(0)")
            a(f"v_writelane_b32 v{vStamp}, s98, 63")
            a(f"s_lshl_b32 s3, s2, 3")
            a(f"s_add_u32 s3, s3, s{sW}")
            a(f"s_lshl_b32 s3, s3, 8")
            a(f"s_add_u32 s3, s3, 0x2000000")
            a(f"v_lshlrev_b32 v1, 2, v0")
            a(f"buffer_store_dword v{vStamp}, v1, {srd(SWS)}, s3 offen")
            if self.o.dbg and isB:
                lab = a.label("dbg")
                a("s_cmp_eq_u32 s2, 8")
                a(f"s_cbranch_scc0 {lab}")
                a(f"s_cmp_eq_u32 s{sW}, 0")
                a(f"s_cbranch_scc0 {lab}")
                a("s_mov_b64 s[76:77], s[58:59]")
                a("s_mov_b32 s78, 256")
                a("s_mov_b32 s79, 0x20000")
                a("v_mov_b32 v2, 0")
                a(f"v_readlane_b32 s80, v{vStamp}, 0")
                for k, idx in enumerate([1, 3, 5, 19, 21, 23, 25, 27, 29, 31, 33, 35, 39, 44]):
                    a(f"v_readlane_b32 s81, v{vStamp}, {idx}")
                    a("s_sub_u32 s81, s81, s80")
                    a(f"v_writelane_b32 v2, s81, {k}")
                a(f"v_readlane_b32 s80, v{vStamp}, 62")
                a(f"v_readlane_b32 s81, v{vStamp}, 63")
                a("s_sub_u32 s81, s81, s80")
                a(f"v_writelane_b32 v2, s81, 15")
                a("buffer_store_dword v2, v1, s[76:79], 0 offen")
                a("s_mov_b32 s3, 0x3000000")
                a(f"buffer_store_dword v2, v1, {srd(SWS)}, s3 offen")
                a(f"{lab}:")
        a("s_endpgm")

    def kernel1(self):
        a = self.a
        self.prologue()
        self.qphase()
        a(f"s_cmp_eq_u32 s{sBr}, 0")
        a("s_cbranch_scc0 L_branchB")
        snap = (copy.deepcopy(self.vm[0].q), copy.deepcopy(self.vm[1].q), dict(self.base), self.fr, self.nstamp)
        self.main(False)
        a("L_branchB:")
        a("s_nop 7")
        self.vm[0].q, self.vm[1].q, self.base, self.fr, self.nstamp = snap
        self.main(True)
        a("L_exit:")
        a("s_endpgm")


def kernel2(opt):
    a = Asm()
    a("s_cmp_ge_u32 s2, 288")
    a("s_cbranch_scc1 L2_exit")
    a("s_load_dwordx2 s[8:9], s[0:1], 96")
    a("s_load_dwordx2 s[12:13], s[0:1], 80")
    a(f"s_mul_hi_u32 s4, s2, {(2 ** 32 + 17) // 18}")
    a("s_mul_i32 s3, s4, 18")
    a("s_sub_u32 s3, s2, s3")
    a("s_lshr_b32 s5, s3, 1")
    a("s_and_b32 s6, s3, 1")
    a(f"s_mul_i32 s7, s4, {16 * 73728}")
    a("s_lshl_b32 s3, s3, 12")
    a("s_add_u32 s7, s7, s3")
    a("v_lshrrev_b32 v1, 4, v0")
    a("v_bfe_u32 v2, v0, 2, 2")
    a("v_and_b32 v3, 3, v0")
    a("v_lshlrev_b32 v4, 10, v2")
    a("v_lshl_or_b32 v4, v1, 6, v4")
    a("v_lshl_or_b32 v4, v3, 4, v4")
    a("s_mov_b32 s10, 0x10000000")
    a("s_mov_b32 s11, 0x20000")
    a("s_mov_b32 s14, 1179648")
    a("s_mov_b32 s15, 0x20000")
    a("s_waitcnt lgkmcnt(0)")
    for h in range(16):
        a(f"buffer_load_dwordx4 {vr(16 + 4 * h, 4)}, v4, s[8:11], s7 offen")
        if h < 15:
            a("s_add_u32 s7, s7, 73728")
    a("s_and_b32 s3, s4, 7")
    a("s_lshl_b32 s3, s3, 1")
    a("s_add_u32 s3, s3, s6")
    a(f"s_mul_i32 s3, s3, {32 * 2304}")
    a("s_lshr_b32 s4, s4, 3")
    a("s_mul_i32 s4, s4, 1152")
    a("s_add_u32 s3, s3, s4")
    a("s_lshl_b32 s5, s5, 7")
    a("s_add_u32 s3, s3, s5")
    a(f"s_add_u32 s4, s3, {16 * 2304}")
    a("v_mul_u32_u24 v5, 2304, v1")
    a("v_and_b32 v6, 15, v0")
    a("v_lshl_add_u32 v5, v6, 3, v5")
    for h in range(16):
        a(f"s_waitcnt vmcnt({15 - h})")
        for k in range(4):
            s = 16 + 4 * h + k
            if h == 0:
                a(f"v_lshlrev_b32 v{8 + 2 * k}, 16, v{s}")
                a(f"v_and_b32 v{9 + 2 * k}, 0xffff0000, v{s}")
            else:
                a(f"v_lshlrev_b32 v6, 16, v{s}")
                a(f"v_and_b32 v7, 0xffff0000, v{s}")
                a(f"v_add_f32 v{8 + 2 * k}, v{8 + 2 * k}, v6")
                a(f"v_add_f32 v{9 + 2 * k}, v{9 + 2 * k}, v7")
    for k in range(4):
        a(f"v_cvt_pk_bf16_f32 v{16 + k}, v{8 + 2 * k}, v{9 + 2 * k}")
    a("buffer_store_dwordx2 v[16:17], v5, s[12:15], s3 offen")
    a("buffer_store_dwordx2 v[18:19], v5, s[12:15], s4 offen")
    if opt.dbg:
        a("s_cmp_eq_u32 s2, 0")
        a("s_cbranch_scc0 L2_exit")
        a("s_load_dwordx2 s[16:17], s[0:1], 88")
        a("s_mov_b32 s18, 256")
        a("s_mov_b32 s19, 0x20000")
        a("v_lshlrev_b32 v1, 2, v0")
        a("s_mov_b32 s3, 0x3000000")
        a("buffer_load_dword v2, v1, s[8:11], s3 offen")
        a("s_waitcnt vmcnt(0) lgkmcnt(0)")
        a("buffer_store_dword v2, v1, s[16:19], 0 offen")
        if opt.spin >= 0:
            clk = "s_memrealtime" if opt.spin == 15 else "s_memtime"
            a("v_readfirstlane_b32 s20, v0")
            a("s_cmp_eq_u32 s20, 0")
            a("s_cbranch_scc0 L2_exit")
            a(f"v_readlane_b32 s20, v2, {opt.spin}")
            a(f"s_min_u32 s20, s20, {20000 if opt.spin == 15 else 400000}")
            a(f"{clk} s[22:23]")
            a("s_waitcnt lgkmcnt(0)")
            a("L2_spin:")
            a(f"{clk} s[24:25]")
            a("s_waitcnt lgkmcnt(0)")
            a("s_sub_u32 s21, s24, s22")
            a("s_cmp_lt_u32 s21, s20")
            a("s_cbranch_scc1 L2_spin")
    a("L2_exit:")
    a("s_endpgm")
    a.pad()
    return a.text()


def kd(name, vg, sg):
    return f""".amdhsa_kernel {name}
  .amdhsa_next_free_vgpr {vg}
  .amdhsa_next_free_sgpr {sg}
  .amdhsa_accum_offset {(vg + 3) // 4 * 4}
  .amdhsa_group_segment_fixed_size 0
  .amdhsa_kernarg_size 104
  .amdhsa_user_sgpr_count 2
  .amdhsa_user_sgpr_kernarg_segment_ptr 1
  .amdhsa_system_sgpr_workgroup_id_x 1
.end_amdhsa_kernel
"""


def build(opt):
    g = Gen(opt)
    g.kernel1()
    npad = g.a.pad()
    k1, k2 = NAME + "_kernel", "reduce_heads_kernel"
    s = HEADER
    s += f"; @launch kernel={k1} grid=(256,1,1) block=(512,1,1) lds=163840\n"
    s += f"; @launch kernel={k2} grid=(288,1,1) block=(256,1,1) lds=0\n"
    s += '.amdgcn_target "amdgcn-amd-amdhsa--gfx950"\n.text\n'
    s += f".globl {k1}\n.p2align 8\n.type {k1},@function\n{k1}:\n" + g.a.text()
    s += f".globl {k2}\n.p2align 8\n.type {k2},@function\n{k2}:\n" + kernel2(opt)
    s += '.section .rodata,"a"\n.p2align 6\n' + kd(k1, 256, 102) + ".p2align 6\n" + kd(k2, 80, 32)
    return s, npad


if __name__ == "__main__":
    o = Opt()
    out = sys.argv[1]
    for arg in sys.argv[2:]:
        k, v = arg.split("=")
        setattr(o, k, type(getattr(Opt, k))(int(v)) if getattr(Opt, k) is not None else v)
    s, npad = build(o)
    open(out, "w").write(s)
    print("wrote", out, len(s), "bytes; nops inserted", npad)
```

```python
import struct
import sys

from asmlib import Asm, Fifo
from gen import HEADER, NAME, f32hex, kd, kernel2, vr, srd


class Opt:
    stamps = False
    dbg = False
    spin = -1
    kv_nt = True
    touch = 2
    dA = 3
    dB = 2
    kpre = 3
    wo_warm = 4
    prio = False


vStamp = 3
vKV = [4, 5]
vWq = [6, 7]
vX, vWo, vLin, vSt, vL0, vDummy, vPw, vPr = 8, 9, 10, 11, 12, 13, 14, 15
vRa = list(range(16, 24))
vRb = list(range(24, 32))
vQ = 32
vO = 32
FB = [64, 96]
vS = 128
sW, sKH, sQB, sBr = 4, 5, 6, 7
SX, SK, SV, SWQ, SWO, SWS = 8, 12, 16, 20, 24, 28
sXoff, sWqoff, sKVoff, sWooff = 32, 33, 34, 35
sW2k, sC, sStoff, sT, sT2, sHp, sB, sW1k, sHH = 62, 63, 64, 65, 66, 67, 68, 69, 72
SBV = 76

PG = 16384
M32 = "v_mfma_f32_32x32x16_bf16"
M16 = "v_mfma_f32_16x16x32_bf16"


class Gen:
    def __init__(self, opt):
        self.o = opt
        self.a = Asm()
        self.vm = Fifo(self.a, "vmcnt", 63)
        self.nlg = 0
        self.base = {}
        self.nstamp = 0

    def stamp(self):
        if not self.o.stamps:
            return
        a = self.a
        a("s_memtime s[98:99]")
        a("s_waitcnt lgkmcnt(0)")
        a(f"v_writelane_b32 v{vStamp}, s98, {self.nstamp}")
        self.nstamp += 1

    def ds(self, text):
        if self.nlg >= 15:
            self.a("s_waitcnt lgkmcnt(7)")
            self.nlg = 7
        self.a(text)
        self.nlg += 1

    def lgwait(self, n=0):
        if self.nlg > n:
            self.a(f"s_waitcnt lgkmcnt({n})")
            self.nlg = n

    def sync(self, tags=()):
        self.lgwait(0)
        ns = [self.vm.count_for(t) for t in tags]
        ns = [(n, t) for n, t in zip(ns, tags) if n is not None]
        if ns:
            self.vm.wait(min(ns)[1])
        self.a("s_barrier")
        self.stamp()

    def rebase(self, name, regs, lo, hi):
        cur = self.base.get(name, 0)
        if lo - cur >= 0 and hi - cur <= 65535:
            return cur
        d = (lo - cur) & 0xFFFFFFFF
        for r in regs:
            self.a(f"v_add_u32 v{r}, 0x{d:x}, v{r}")
        self.base[name] = lo
        return lo

    def emit(self, x):
        if callable(x):
            x()
        elif x.startswith("ds_"):
            self.ds(x)
        else:
            self.a(x)

    def merge(self, mfmas, reads=(), fill=(), dmas=(), rfrac=0.6):
        mfmas, reads, fill, dmas = list(mfmas), list(reads), list(fill), list(dmas)
        n = len(mfmas)
        if n == 0:
            for x in reads:
                self.emit(x)
            k = max(1, len(fill) // max(1, len(dmas)))
            fi = 0
            for d in dmas:
                self.emit(d)
                for x in fill[fi:fi + k]:
                    self.emit(x)
                fi += k
            for x in fill[fi:]:
                self.emit(x)
            return
        nr = max(1, int(n * rfrac))
        ri = fi = di = 0
        for i, m in enumerate(mfmas):
            self.emit(m)
            want = min(len(reads), -(-len(reads) * (i + 1) // nr))
            while ri < want:
                self.emit(reads[ri])
                ri += 1
            want = -(-len(dmas) * (i + 1) // n)
            while di < want:
                self.emit(dmas[di])
                di += 1
            want = len(fill) * (i + 1) // n
            while fi < want:
                self.emit(fill[fi])
                fi += 1

    def dma(self, m0s, m0imm, voff, s, soffs, soimm, off, tag, nt=False, setup=True):
        def f():
            a = self.a
            if setup:
                a(f"s_add_u32 m0, s{m0s}, {m0imm}")
                a(f"s_add_u32 s{sT}, s{soffs}, {soimm}")
            o = f" offset:{off}" if off else ""
            n = " nt" if nt else ""
            a(f"buffer_load_dwordx4 v{voff}, {srd(s)}, s{sT} offen{o}{n} lds")
            self.vm.push(tag)
        return f

    def pair(self, f, g):
        def h():
            f()
            g()
        return h

    def d_wq(self, t):
        pg = (6 + t % 3) * PG
        return [self.dma(sW2k, pg + i * 1024, vWq[i], SWQ, sWqoff, (32 * t + 2 * i) * 8192, 0, ("q", t))
                for i in range(2)]

    def d_x(self, u):
        return [self.dma(sW1k, 9 * PG + (u & 1) * 8192, vX, SX, sXoff, u * 128, 0, ("q", 2 * u))]

    def d_kv(self, s, hd, page):
        sr, i = (SK, s) if s < 8 else (SV, s - 8)
        so = hd * 131072 + i * 16384
        nt = self.o.kv_nt
        return [self.pair(self.dma(sW2k, page * PG, vKV[0], sr, sKVoff, so, 0, ("kv", s), nt),
                          self.dma(sW2k, 0, vKV[1], sr, sKVoff, 0, 1024, ("kv", s), nt, setup=False))]

    def d_wo(self, p, slot):
        out = []
        for hd in range(2):
            for i in range(2):
                out.append(self.dma(sW2k, (2 * slot + hd) * PG + i * 1024, vWo, SWO, sWooff,
                                    (hd * 128 + i * 8) * 1152 + p * 128, 0, ("wo", p)))
        return out

    def touch(self, srdn, voff, emit_soff):
        def f():
            emit_soff()
            self.a(f"buffer_load_dword v{vDummy}, v{voff}, {srd(srdn)}, s{sT} offen")
            self.vm.push("warm")
        return f

    def prologue(self):
        a = self.a
        a("s_cmp_ge_u32 s2, 256")
        a("s_cbranch_scc1 L_exit")
        if self.o.stamps:
            a("s_memrealtime s[94:95]")
            a("s_memtime s[96:97]")
        a("s_load_dwordx16 s[36:51], s[0:1], 0")
        a("s_load_dwordx8 s[52:59], s[0:1], 64")
        a("s_load_dwordx2 s[60:61], s[0:1], 96")
        a("v_lshrrev_b32 v1, 6, v0")
        a("v_and_b32 v0, 63, v0")
        a(f"v_readfirstlane_b32 s{sW}, v1")
        a("s_lshr_b32 s3, s2, 3")
        a(f"s_and_b32 s{sBr}, s3, 1")
        a(f"s_lshr_b32 s{sB}, s3, 2")
        a("s_bfe_u32 s3, s3, 0x10001")
        a(f"s_and_b32 s{sHp}, s2, 7")
        a(f"s_lshl_b32 s{sHp}, s{sHp}, 1")
        a(f"s_add_u32 s{sHp}, s{sHp}, s3")
        a(f"s_and_b32 s{sKH}, s{sW}, 1")
        a(f"s_bfe_u32 s{sQB}, s{sW}, 0x10001")
        a(f"s_lshr_b32 s{sHH}, s{sW}, 2")
        a(f"s_lshl_b32 s{sW2k}, s{sW}, 11")
        a(f"s_lshl_b32 s{sW1k}, s{sW}, 10")
        a(f"s_mov_b32 s{sC}, {f32hex(128 ** -0.5 * 1.4426950408889634)}")
        T = FB[0]
        g, i16, rr, ch, t0, t1, h = (T + k for k in range(7))
        a(f"v_lshrrev_b32 v{g}, 4, v0")
        a(f"v_and_b32 v{i16}, 15, v0")
        a(f"v_lshrrev_b32 v{rr}, 3, v0")
        a(f"v_and_b32 v{ch}, 7, v0")
        a(f"v_lshrrev_b32 v{h}, 5, v0")
        a(f"v_lshlrev_b32 v{t0}, 2, v{g}")
        a(f"v_xor_b32 v{t0}, v{t0}, v{i16}")
        a(f"v_lshlrev_b32 v{t0}, 4, v{t0}")
        a(f"v_lshl_or_b32 v{t0}, v{g}, 8, v{t0}")
        a(f"s_lshl_b32 s3, s{sKH}, 5")
        a(f"v_xor_b32 v{vKV[0]}, s3, v{t0}")
        a(f"v_xor_b32 v{vKV[1]}, 16, v{vKV[0]}")
        a(f"v_and_b32 v{t0}, 31, v0")
        a(f"v_lshlrev_b32 v{t1}, 2, v{h}")
        a(f"v_xor_b32 v{t0}, v{t0}, v{t1}")
        a(f"v_lshlrev_b32 v{t0}, 4, v{t0}")
        a(f"v_lshl_or_b32 v{vWq[0]}, v{h}, 13, v{t0}")
        a(f"v_xor_b32 v{vWq[1]}, 128, v{vWq[0]}")
        a(f"v_xor_b32 v{t0}, v{ch}, v{g}")
        a(f"v_lshlrev_b32 v{t0}, 4, v{t0}")
        a(f"s_lshl_b32 s3, s{sKH}, 6")
        a(f"v_xor_b32 v{t0}, s3, v{t0}")
        a(f"v_mul_u32_u24 v{t1}, 1152, v{rr}")
        a(f"v_add_u32 v{vX}, v{t1}, v{t0}")
        a(f"v_and_b32 v{t0}, 6, v{rr}")
        a(f"v_xor_b32 v{t0}, v{t0}, v{ch}")
        a(f"v_lshl_add_u32 v{vWo}, v{t0}, 4, v{t1}")
        a(f"s_mul_i32 s{sT2}, s{sB}, 73728")
        a(f"s_mul_i32 s3, s{sW}, {8 * 1152}")
        a(f"s_add_u32 s{sXoff}, s{sT2}, s3")
        a(f"s_lshl_b32 s{sWqoff}, s{sHp}, 9")
        a(f"s_lshl_b32 s3, s{sW}, 15")
        a(f"s_add_u32 s{sWqoff}, s{sWqoff}, s3")
        a(f"s_mul_i32 s{sWooff}, s{sHp}, {256 * 1152}")
        a(f"s_mul_i32 s3, s{sW}, {16 * 1152}")
        a(f"s_add_u32 s{sWooff}, s{sWooff}, s3")
        a(f"s_lshl_b32 s3, s{sB}, 4")
        a(f"s_add_u32 s3, s3, s{sHp}")
        a(f"s_add_u32 s{sT}, s{sBr}, 17")
        a(f"s_lshl_b32 s{sKVoff}, s3, s{sT}")
        a(f"s_add_u32 s{sKVoff}, s{sKVoff}, s{sW2k}")
        a(f"s_lshl_b32 s73, s3, 18")
        a(f"s_lshl_b32 s{sT}, s{sBr}, 7")
        a(f"s_add_u32 s3, s3, s{sT}")
        a(f"s_mul_i32 s{sStoff}, s3, 73728")
        a(f"s_add_u32 s{sStoff}, s{sStoff}, s{sW1k}")
        a("s_waitcnt lgkmcnt(0)")
        a(f"s_cmp_eq_u32 s{sBr}, 0")
        for dst, pa, pb in ((SX, 36, 46), (SK, 38, 48), (SV, 40, 50), (SWQ, 42, 52), (SWO, 44, 54)):
            a(f"s_cselect_b64 s[{dst}:{dst + 1}], s[{pa}:{pa + 1}], s[{pb}:{pb + 1}]")
        a(f"s_lshl_b32 s{SK + 2}, 0x1000000, s{sBr}")
        a(f"s_mov_b32 s{SV + 2}, s{SK + 2}")
        a(f"s_mov_b32 s{SX + 2}, 589824")
        a(f"s_mov_b32 s{SWQ + 2}, 4718592")
        a(f"s_mov_b32 s{SWO + 2}, 4718592")
        a(f"s_mov_b64 s[{SWS}:{SWS + 1}], s[60:61]")
        a(f"s_mov_b32 s{SWS + 2}, 0x10000000")
        a(f"s_mov_b64 s[{SBV}:{SBV + 1}], s[50:51]")
        a(f"s_mov_b32 s{SBV + 2}, 0x2000000")
        for d in (SX, SK, SV, SWQ, SWO, SWS, SBV):
            a(f"s_mov_b32 s{d + 3}, 0x20000")
        a(f"v_lshlrev_b32 v{t0}, 7, v0")
        a(f"s_lshl_b32 s3, s{sW}, 13")
        self.touch(SX, t0, lambda: a(f"s_add_u32 s{sT}, s{sT2}, s3"))()
        a(f"v_lshlrev_b32 v{t1}, 7, v{ch}")
        a(f"s_add_u32 s{sT2}, s{sT2}, 65536")
        self.touch(SX, t1, lambda: a(f"s_add_u32 s{sT}, s{sT2}, s{sW1k}"))()
        a(f"v_lshrrev_b32 v{t0}, 2, v0")
        a(f"v_min_u32 v{t0}, 8, v{t0}")
        a(f"v_and_b32 v{t1}, 3, v0")
        a(f"v_lshlrev_b32 v{t1}, 7, v{t1}")
        a(f"v_lshl_or_b32 v{t0}, v{t0}, 13, v{t1}")
        a(f"s_lshl_b32 s3, s{sB}, 3")
        a(f"s_add_u32 s3, s3, s{sW}")
        a(f"s_mul_i32 s3, s3, {9 * 8192}")
        a(f"s_lshl_b32 s{sT2}, s{sHp}, 9")
        self.touch(SWQ, t0, lambda: a(f"s_add_u32 s{sT}, s{sT2}, s3"))()

    def addr_q_k(self):
        a = self.a
        T = FB[1]
        q, h, r, c, t0, t1, g1 = (T + k for k in range(7))
        a(f"v_and_b32 v{q}, 31, v0")
        a(f"v_lshrrev_b32 v{h}, 5, v0")
        a(f"v_bfe_u32 v{r}, v0, 2, 2")
        a(f"v_and_b32 v{c}, 3, v0")
        a(f"v_bfe_u32 v{g1}, v0, 4, 1")
        a(f"v_lshlrev_b32 v{t0}, 3, v{c}")
        a(f"v_lshl_or_b32 v{t0}, v{g1}, 5, v{t0}")
        a(f"v_lshl_or_b32 v{t0}, v{r}, 6, v{t0}")
        a(f"v_lshl_or_b32 v{t0}, v{r}, 9, v{t0}")
        a(f"v_lshl_or_b32 v{t0}, v{h}, 12, v{t0}")
        a(f"s_lshl_b32 s3, s{sHH}, 8")
        a(f"s_lshl_b32 s{sT}, s{sKH}, 7")
        a(f"s_add_u32 s3, s3, s{sT}")
        a(f"v_xor_b32 v{t0}, s3, v{t0}")
        a(f"v_add_u32 v{vRa[0]}, {6 * PG}, v{t0}")
        a(f"v_xor_b32 v{vRa[1]}, 64, v{vRa[0]}")
        a(f"v_bfe_u32 v{t0}, v{q}, 1, 3")
        a(f"v_xor_b32 v{t0}, v{t0}, v{h}")
        a(f"v_lshlrev_b32 v{t0}, 4, v{t0}")
        a(f"v_lshl_or_b32 v{t0}, v{q}, 7, v{t0}")
        a(f"s_lshl_b32 s3, s{sQB}, 12")
        a(f"s_add_u32 s3, s3, {9 * PG}")
        a(f"v_add_u32 v{vRa[2]}, s3, v{t0}")
        for k in range(1, 4):
            a(f"v_xor_b32 v{vRa[2 + k]}, {32 * k}, v{vRa[2]}")
        a(f"v_lshl_or_b32 v{t0}, v{c}, 2, v{r}")
        a(f"v_xor_b32 v{t0}, v{t0}, v{h}")
        a(f"v_lshlrev_b32 v{t0}, 4, v{t0}")
        a(f"v_lshl_or_b32 v{t0}, v{q}, 8, v{t0}")
        a(f"s_lshl_b32 s3, s{sKH}, 7")
        a(f"v_xor_b32 v{t0}, s3, v{t0}")
        a(f"s_mul_i32 s74, s{sBr}, s{sHH}")
        a(f"s_lshl_b32 s74, s74, 14")
        a(f"s_lshl_b32 s3, s{sKH}, 13")
        a(f"s_add_u32 s3, s3, s74")
        a(f"v_add_u32 v{vRb[0]}, s3, v{t0}")
        for k in range(1, 8):
            a(f"v_xor_b32 v{vRb[k]}, {32 * k}, v{vRb[0]}")
        a(f"v_lshlrev_b32 v{vLin}, 4, v0")
        a(f"v_and_b32 v{t0}, 15, v0")
        a(f"v_lshlrev_b32 v{t0}, 6, v{t0}")
        a(f"v_lshrrev_b32 v{t1}, 4, v0")
        a(f"v_lshl_or_b32 v{vSt}, v{t1}, 4, v{t0}")
        a(f"s_lshl_b32 s3, s{sW}, 12")
        a(f"s_add_u32 s3, s3, {8 * PG}")
        a(f"v_add_u32 v{vPw}, s3, v{vLin}")
        a(f"v_xor_b32 v{vPr}, 4096, v{vPw}")
        if self.o.stamps:
            a(f"v_mov_b32 v{vStamp}, 0")
            a(f"v_writelane_b32 v{vStamp}, s94, 62")
            a(f"v_writelane_b32 v{vStamp}, s96, 0")
            self.nstamp = 1

    def addr_v_ops(self):
        t0, t1 = 2, vL0
        ops = [
            f"v_and_b32 v{t0}, 3, v0",
            f"v_lshlrev_b32 v{t0}, 3, v{t0}",
            f"v_bfe_u32 v{t1}, v0, 4, 1",
            f"v_lshl_or_b32 v{t0}, v{t1}, 5, v{t0}",
            f"v_bfe_u32 v{t1}, v0, 2, 2",
            f"v_lshl_or_b32 v{t0}, v{t1}, 6, v{t0}",
            f"v_lshl_or_b32 v{t0}, v{t1}, 8, v{t0}",
            f"v_lshrrev_b32 v{t1}, 5, v0",
            f"v_lshl_or_b32 v{t0}, v{t1}, 10, v{t0}",
            f"v_lshlrev_b32 v{t1}, 4, v{t1}",
            f"v_xor_b32 v{t0}, v{t0}, v{t1}",
            f"s_mul_i32 s3, s{sKH}, {8192 + 128}",
            f"v_xor_b32 v{t0}, s3, v{t0}",
            f"v_add_u32 v{vRa[0]}, s74, v{t0}",
        ]
        for k in range(1, 8):
            x = (8192 if k & 4 else 0) | (64 if k & 2 else 0) | ((32 | 2048) if k & 1 else 0)
            ops.append(f"v_xor_b32 v{vRa[k]}, {x}, v{vRa[0]}")
        ops += [f"s_add_u32 s3, s{sW2k}, {8 * PG}",
                f"v_add_u32 v{vPw}, s3, v{vLin}",
                f"v_xor_b32 v{vPr}, 2048, v{vPw}"]
        return ops

    def addr_w_ops(self, oslot):
        t0, t1 = vRb[3], vRb[4]
        ob = oslot * 2 * PG
        return [
            f"v_and_b32 v{t0}, 3, v0",
            f"v_lshlrev_b32 v{t0}, 3, v{t0}",
            f"v_bfe_u32 v{t1}, v0, 3, 2",
            f"v_lshl_or_b32 v{t0}, v{t1}, 5, v{t0}",
            f"v_bfe_u32 v{t1}, v0, 2, 3",
            f"v_lshl_or_b32 v{t0}, v{t1}, 7, v{t0}",
            f"v_lshrrev_b32 v{t1}, 5, v0",
            f"v_lshl_or_b32 v{t0}, v{t1}, 11, v{t0}",
            f"s_and_b32 s3, s{sW}, 3",
            f"s_lshl_b32 s3, s3, 5",
            f"v_xor_b32 v{vRb[0]}, s3, v{t0}",
            f"v_and_b32 v{t0}, 15, v0",
            f"v_lshlrev_b32 v{t0}, 4, v{t0}",
            f"v_lshrrev_b32 v{t1}, 4, v0",
            f"v_lshl_or_b32 v{t0}, v{t1}, 9, v{t0}",
            f"s_lshl_b32 s3, s{sHH}, 11",
            f"s_add_u32 s3, s3, {ob}",
            f"v_add_u32 v{vRb[1]}, s3, v{t0}",
            f"s_lshl_b32 s3, s{sHH}, 14",
            f"s_lshl_b32 s75, s{sKH}, 13",
            f"s_add_u32 s3, s3, s75",
            f"s_lshl_b32 s75, s{sQB}, 11",
            f"s_add_u32 s3, s3, s75",
            f"s_add_u32 s3, s3, {ob}",
            f"v_add_u32 v{vRb[2]}, s3, v{vLin}",
        ]

    def max_ops(self, u):
        b = vS + 16 * u
        ops = []
        k = 0
        if u == 0:
            ops.append(f"v_max_f32 v1, v{b}, v{b + 1}")
            k = 2
        while k < 16:
            ops.append(f"v_max3_f32 v1, v1, v{b + k}, v{b + k + 1}")
            k += 2
        return ops

    def p_ops(self, u):
        b = vS + 16 * u
        ops = []
        for k in range(0, 16, 4):
            for j in range(4):
                ops.append(f"v_fma_f32 v{b + k + j}, v{b + k + j}, s{sC}, -v2")
            for j in range(4):
                ops.append(f"v_exp_f32 v{b + k + j}, v{b + k + j}")
            if k >= 4:
                ops += self.l_pack(b, k - 4, u)
        ops += self.l_pack(b, 12, u)
        for kk in range(2):
            ops.append(f"ds_write_b128 v{vPw}, {vr(b + 4 * kk, 4)} offset:{(u & 1) * PG + kk * 1024}")
        return ops

    def l_pack(self, b, k, u):
        ops = []
        if u == 0 and k == 0:
            ops.append(f"v_add_f32 v{vL0}, v{b}, v{b + 1}")
            ops.append(f"v_add_f32 v1, v{b + 2}, v{b + 3}")
        else:
            ops.append(f"v_add_f32 v{vL0}, v{vL0}, v{b + k}")
            ops.append(f"v_add_f32 v1, v1, v{b + k + 1}")
            ops.append(f"v_add_f32 v{vL0}, v{vL0}, v{b + k + 2}")
            ops.append(f"v_add_f32 v1, v1, v{b + k + 3}")
        ops.append(f"v_cvt_pk_bf16_f32 v{b + k // 2}, v{b + k}, v{b + k + 1}")
        ops.append(f"v_cvt_pk_bf16_f32 v{b + k // 2 + 1}, v{b + k + 2}, v{b + k + 3}")
        return ops

    def body(self, isB):
        a, o = self.a, self.o
        nh = 2 if isB else 1
        issue = {}

        def at(step, lst):
            issue.setdefault(step, []).extend(lst)

        page = {}
        if isB:
            for s in range(16):
                page[s] = 2 * (s % 4)
            wslot = [0, 1, 3, 4, 2, 0, 1, 3, 4]
            oslot = 2
            first = []
            for s in range(o.kpre):
                for hd in range(2):
                    first += self.d_kv(s, hd, page[s] + hd)
            late = [(s, hd) for s in range(o.kpre, 4) for hd in range(2)]
            for k, (s, hd) in enumerate(late):
                at(("q", 17) if k == len(late) - 1 else ("q", 16), self.d_kv(s, hd, page[s] + hd))
            assert o.dB <= 3
            for s in range(4, 16):
                st = 1 if s == 4 else s - o.dB
                for hd in range(2):
                    at(("kv", st), self.d_kv(s, hd, page[s] + hd))
            wat = [("kv", 16 - o.dB), ("kv", 17 - o.dB), ("kv", 16)] + [("wo", p) for p in range(6)]
        else:
            for s in range(16):
                page[s] = s % 6
            wslot = [3, 0, 1, 4, 2, 3, 0, 1, 4]
            oslot = 2
            first = []
            for s in range(16):
                st = s - o.dA
                at(("kv", st) if st >= 0 else ("q", 17 if st == -1 else 16), self.d_kv(s, 0, page[s]))
            wat = [("kv", 14), ("kv", 15), ("kv", 16)] + [("wo", p) for p in range(6)]
            for rd in range(o.touch):
                def soff(rd=rd):
                    a(f"s_lshl_b32 s80, s{sHH}, 17")
                    a(f"s_and_b32 s{sT}, s{sW}, 3")
                    a(f"s_lshl_b32 s{sT}, s{sT}, 13")
                    a(f"s_add_u32 s80, s80, s{sT}")
                    a(f"s_add_u32 s80, s80, s73")
                    a(f"s_add_u32 s{sT}, s80, {131072 - 32768 * (o.touch - rd)}")
                at(("kv", 16 - o.dA), [self.touch(SBV, vX, soff)])
        for p in range(9):
            at(wat[p], self.d_wo(p, wslot[p]))
        def wo_soff():
            a(f"s_lshl_b32 s80, s{sB}, 3")
            a(f"s_add_u32 s80, s80, s{sW}")
            a(f"s_mul_i32 s80, s80, 4608")
            a(f"s_mul_i32 s{sT}, s{sHp}, {256 * 1152}")
            a(f"s_add_u32 s{sT}, s{sT}, s80")
        issue.setdefault(("kv", 14 - o.wo_warm), []).insert(0, self.touch(SWO, vWq[0], wo_soff))
        for t in range(1, 16):
            lst = self.d_wq(t + 2)
            if t % 2 == 0:
                lst = self.d_x((t + 2) // 2) + lst
            issue[("q", t)] = lst + issue.get(("q", t), [])

        for f in first + self.d_x(0) + self.d_wq(0) + self.d_wq(1) + self.d_x(1) + self.d_wq(2):
            f()
        self.addr_q_k()
        if o.prio:
            lab = a.label("prio")
            a(f"s_cmp_ge_u32 s{sW}, 4")
            a(f"s_cbranch_scc0 {lab}")
            a("s_setprio 1")
            a(f"{lab}:")

        def q_reads(t):
            fb = FB[t & 1]
            st = (t % 3) * PG
            out = []
            for ks in range(2):
                kk = 2 * (t & 1) + ks
                out.append(f"ds_read_b128 {vr(fb + 12 * ks, 4)}, v{vRa[2 + kk]} offset:{((t >> 1) & 1) * 8192}")
                for e in range(2):
                    for wh in range(2):
                        out.append(f"ds_read_b64_tr_b16 {vr(fb + 12 * ks + 4 + 4 * e + 2 * wh, 2)}, v{vRa[e]} "
                                   f"offset:{st + (16 * ks + 4 * wh) * 512}")
            return out

        def q_mfma(t):
            fb = FB[t & 1]
            out = []
            for ks in range(2):
                for e in range(2):
                    d = vr(vS + 96 + 16 * e, 16)
                    c = "0" if (t == 0 and ks == 0) else d
                    out.append(f"{M32} {d}, {vr(fb + 12 * ks + 4 + 4 * e, 4)}, {vr(fb + 12 * ks, 4)}, {c}")
            return out

        for t in range(18):
            self.sync([("q", t)])
            self.merge(q_mfma(t - 1) if t else [], q_reads(t), dmas=issue.get(("q", t), []))

        def k_reads(s):
            sb = page[s] * PG
            cur = self.rebase("k", vRb, sb, sb + 2 * PG - 1)
            return [f"ds_read_b128 {vr(FB[s & 1] + 4 * i, 4)}, v{vRb[i]} offset:{sb - cur}" for i in range(8)]

        def k_mfma(s):
            d = vr(vS + 16 * s, 16)
            return [f"{M32} {d}, {vr(FB[s & 1] + 4 * i, 4)}, {vr(vQ + 4 * i, 4)}, {'0' if i == 0 else d}"
                    for i in range(8)]

        self.sync([("kv", 0)])
        self.merge(q_mfma(17), k_reads(0), dmas=issue.get(("kv", 0), []))
        qa = vS + 96
        for k in range(16):
            a(f"v_cvt_pk_bf16_f32 v{vQ + k}, v{qa + 2 * k}, v{qa + 2 * k + 1}")
        for i in range(4):
            a(f"v_permlane32_swap_b32 v{vQ + 4 * i}, v{vQ + 4 * i + 2}")
            a(f"v_permlane32_swap_b32 v{vQ + 4 * i + 1}, v{vQ + 4 * i + 3}")
        for i in range(4):
            self.ds(f"ds_write_b128 v{vPw}, {vr(vQ + 4 * i, 4)} offset:{i * 1024}")
        a(f"v_lshlrev_b32 v{vX}, 7, v0")
        a(f"v_min_u32 v{vWq[0]}, 35, v0")
        a(f"v_lshlrev_b32 v{vWq[0]}, 7, v{vWq[0]}")
        for s in range(1, 8):
            self.sync([("kv", s)])
            mf = k_mfma(s - 1)
            if s == 1:
                for i in range(4):
                    self.ds(f"ds_read_b128 {vr(vQ + 16 + 4 * i, 4)}, v{vPr} offset:{i * 1024}")
                rd = k_reads(s)
                self.merge(mf[:4], rd, rfrac=1.0)
                self.lgwait(8)
                self.merge(mf[4:], dmas=issue.get(("kv", s), []))
                continue
            fill = self.max_ops(s - 2)
            if s == 3:
                fill = fill + self.addr_v_ops()
            self.merge(mf, k_reads(s), fill, issue.get(("kv", s), []))
        self.lgwait(0)
        self.merge(k_mfma(7), fill=self.max_ops(6))
        for op in self.max_ops(7):
            a(op)
        a("v_mov_b32 v2, v1")
        a("v_permlane32_swap_b32 v1, v2")
        a("v_max_f32 v1, v1, v2")
        self.ds(f"ds_write_b32 v{vPw}, v1 offset:{PG}")
        self.sync()
        self.ds(f"ds_read_b32 v2, v{vPr} offset:{PG}")
        self.lgwait(0)
        a("v_max_f32 v1, v1, v2")
        a(f"v_mul_f32 v2, s{sC}, v1")
        for op in self.p_ops(0):
            self.emit(op)

        def v_reads(u):
            sb = page[8 + u] * PG
            cur = self.rebase("v", vRa, sb, sb + 2 * PG - 1)
            fb = FB[u & 1]
            out = [f"ds_read_b128 {vr(vS + 16 * u + 8 + 4 * kk, 4)}, v{vPr} offset:{(u & 1) * PG + kk * 1024}"
                   for kk in range(2)]
            for kk in range(4):
                for e in range(2):
                    for wh in range(2):
                        out.append(f"ds_read_b64_tr_b16 {vr(fb + 8 * kk + 4 * e + 2 * wh, 2)}, "
                                   f"v{vRa[4 * (kk >> 1) + 2 * e + wh]} offset:{sb - cur + (kk & 1) * 4096}")
            return out

        def v_mfma(u):
            fb = FB[u & 1]
            out = []
            for kk in range(4):
                for e in range(2):
                    d = vr(vO + 16 * e, 16)
                    c = "0" if (u == 0 and kk == 0) else d
                    out.append(f"{M32} {d}, {vr(fb + 8 * kk + 4 * e, 4)}, {vr(vS + 16 * u + 4 * kk, 4)}, {c}")
            return out

        for u in range(8):
            self.sync([("kv", 8 + u)])
            rd = v_reads(u)
            fill = self.p_ops(u + 1) if u < 7 else []
            if u == 7:
                fill += [f"v_add_f32 v{vL0}, v{vL0}, v1", f"v_mov_b32 v1, v{vL0}",
                         f"v_permlane32_swap_b32 v{vL0}, v1", f"v_add_f32 v{vL0}, v{vL0}, v1",
                         f"ds_write_b32 v{vPw}, v{vL0}"]
            if u == 2:
                fill = fill + self.addr_w_ops(oslot)
            self.merge(v_mfma(u - 1) if u else [], rd, fill, issue.get(("kv", 8 + u), []))
        self.sync()
        self.merge(v_mfma(7), [f"ds_read_b32 v1, v{vPr}"], dmas=issue.get(("kv", 16), []))
        self.lgwait(0)
        a(f"v_add_f32 v1, v1, v{vL0}")
        a("v_rcp_f32 v1, v1")
        vP = vS
        for k in range(32):
            a(f"v_mul_f32 v{vO + k}, v1, v{vO + k}")
        for k in range(16):
            a(f"v_cvt_pk_bf16_f32 v{vP + k}, v{vO + 2 * k}, v{vO + 2 * k + 1}")
        for e in range(2):
            for jj in range(2):
                self.ds(f"ds_write_b128 v{vRb[2]}, {vr(vP + 8 * e + 4 * jj, 4)} offset:{e * 4096 + jj * 1024}")

        vOf, vAcc, vPk = 144, 208, 224

        def w_reads(p):
            sb = wslot[p] * 2 * PG
            cur = self.rebase("w", [vRb[0]], sb, sb + 2 * PG - 1)
            fb = FB[p & 1]
            return [f"ds_read_b64_tr_b16 {vr(fb + 4 * k + 2 * wh, 2)}, v{vRb[0]} offset:{sb - cur + k * 4096 + wh * 1024}"
                    for k in range(8) for wh in range(2)]

        def w_mfma(p):
            fb, ac = FB[p & 1], vAcc + 8 * (p & 1)
            out = []
            for k in range(8):
                for nn in range(2):
                    d = vr(ac + 4 * nn, 4)
                    out.append(f"{M16} {d}, {vr(fb + 4 * k, 4)}, {vr(vOf + 8 * k + 4 * nn, 4)}, {'0' if k == 0 else d}")
            return out

        def out_ops(p):
            ac, pk = vAcc + 8 * (p & 1), vPk + 4 * (p & 1)
            ops = [f"v_cvt_pk_bf16_f32 v{pk + k}, v{ac + 2 * k}, v{ac + 2 * k + 1}" for k in range(4)]

            def st():
                a(f"s_add_u32 s{sT2}, s{sStoff}, {p * 8192}")
                a(f"buffer_store_dwordx4 {vr(pk, 4)}, v{vSt}, {srd(SWS)}, s{sT2} offen")
                self.vm.push("st")
            return ops + [st]

        for p in range(9):
            self.sync([("wo", p)])
            rd = w_reads(p)
            if p == 0:
                rd = [f"ds_read_b128 {vr(vOf + 8 * k + 4 * nn, 4)}, v{vRb[1]} offset:{k * 4096 + nn * 256}"
                      for k in range(8) for nn in range(2)] + rd
            self.merge(w_mfma(p - 1) if p else [], rd, out_ops(p - 2) if p >= 2 else [], issue.get(("wo", p), []))
        self.lgwait(0)
        self.merge(w_mfma(8), fill=out_ops(7))
        for op in out_ops(8):
            self.emit(op)
        if o.stamps:
            a("s_waitcnt vmcnt(0)")
            self.stamp()
            a("s_memrealtime s[98:99]")
            a("s_waitcnt lgkmcnt(0)")
            a(f"v_writelane_b32 v{vStamp}, s98, 63")
            a("s_lshl_b32 s3, s2, 3")
            a(f"s_add_u32 s3, s3, s{sW}")
            a("s_lshl_b32 s3, s3, 8")
            a("s_add_u32 s3, s3, 0x2000000")
            a("v_lshlrev_b32 v1, 2, v0")
            a(f"buffer_store_dword v{vStamp}, v1, {srd(SWS)}, s3 offen")
        a("s_endpgm")

    def kernel1(self):
        a = self.a
        self.prologue()
        a(f"s_cmp_eq_u32 s{sBr}, 0")
        a("s_cbranch_scc1 L_branchA")
        snap = list(self.vm.q)
        self.body(True)
        a(".p2align 6")
        a("L_branchA:")
        a("s_nop 4")
        self.vm.q, self.base, self.nstamp, self.nlg = snap, {}, 0, 0
        self.body(False)
        a("L_exit:")
        a("s_endpgm")


def build(opt):
    g = Gen(opt)
    g.kernel1()
    npad = g.a.pad()
    k1, k2 = NAME + "_kernel", "reduce_heads_kernel"
    s = HEADER
    s += f"; @launch kernel={k1} grid=(256,1,1) block=(512,1,1) lds=163840\n"
    s += f"; @launch kernel={k2} grid=(288,1,1) block=(256,1,1) lds=0\n"
    s += '.amdgcn_target "amdgcn-amd-amdhsa--gfx950"\n.text\n'
    s += f".globl {k1}\n.p2align 8\n.type {k1},@function\n{k1}:\n" + g.a.text()
    s += f".globl {k2}\n.p2align 8\n.type {k2},@function\n{k2}:\n" + kernel2(opt)
    s += '.section .rodata,"a"\n.p2align 6\n' + kd(k1, 256, 102) + ".p2align 6\n" + kd(k2, 80, 32)
    return s, npad


if __name__ == "__main__":
    o = Opt()
    out = sys.argv[1]
    for arg in sys.argv[2:]:
        k, v = arg.split("=")
        setattr(o, k, type(getattr(Opt, k))(int(v)))
    s, npad = build(o)
    open(out, "w").write(s)
    print("wrote", out, len(s), "bytes; nops inserted", npad)
```
